```python
import torch

def _softmax(x, axis=-1):
    return torch.softmax(x, dim=axis)
def _gelu(x):
    return torch.nn.functional.gelu(x, approximate="tanh")
def _silu(x):
    return torch.nn.functional.silu(x)
def _sigmoid(x):
    return torch.sigmoid(x)
def _layernorm(x, axis=-1, eps=1e-5):
    m = x.mean(dim=axis, keepdim=True)
    v = x.var(dim=axis, keepdim=True, unbiased=False)
    return (x - m) / torch.sqrt(v + eps)
def _scatter_add(tgt, idx, src, axis=0):
    return tgt.clone().index_add_(axis, idx, src)
def _segment_sum(src, seg, n):
    out = torch.zeros((n,) + src.shape[1:], dtype=src.dtype)
    return out.index_add_(0, seg, src)
def _pad(x, pw):
    flat = tuple(v for pair in reversed(pw) for v in pair)
    return torch.nn.functional.pad(x, flat)

kernel_name = 'gated_mix__softmax_full_mha__glu_gated_glu__prompt'

def setup_inputs():

    _w = (lambda a: (lambda t: t.to(torch.bfloat16) if t.is_floating_point() else t)(torch.as_tensor(a)))
    def _A_setup():
        B, S, D = 1, 2048, 448
        return {
            "x": _w((lambda *s: torch.randn(*s, dtype=torch.bfloat16) * 0.05)(B, S, D)),
            "wqkv": _w((lambda *s: torch.randn(*s, dtype=torch.bfloat16) * 0.8)(D, 3 * D)),
            "wo": _w((lambda *s: torch.randn(*s, dtype=torch.bfloat16) * 0.1)(D, D)),
        }
    _A_in = _A_setup()

    def _B_setup():
        B, S, D, F = 1, 2048, 448, 1792
        return {
            "x": _w((lambda *s: torch.randn(*s, dtype=torch.bfloat16) * 0.05)(B, S, D)),
            "w_gate": _w((lambda *s: torch.randn(*s, dtype=torch.bfloat16) * 0.4)(D, F)),
            "w_up": _w((lambda *s: torch.randn(*s, dtype=torch.bfloat16) * 0.05)(D, F)),
            "w_down": _w((lambda *s: torch.randn(*s, dtype=torch.bfloat16) * 0.05)(F, D)),
        }
    _B_in = _B_setup()

    return {
        "A_x": _A_in["x"],
        "A_wqkv": _A_in["wqkv"],
        "A_wo": _A_in["wo"],
        "B_x": _B_in["x"],
        "B_w_gate": _B_in["w_gate"],
        "B_w_up": _B_in["w_up"],
        "B_w_down": _B_in["w_down"],
        "gate_w": _w((lambda *s: torch.randn(*s, dtype=torch.bfloat16) * 0.05)(448) * 16.0),
    }

def reference(A_x, A_wqkv, A_wo, B_x, B_w_gate, B_w_up, B_w_down, gate_w):
    def _A_ref(x, wqkv, wo):
        B, S, D = x.shape
        H = 16; Dh = D // H
        qkv = (lambda x, *d: x.permute(*d))((x @ wqkv).reshape(B, S, 3, H, Dh), 2, 0, 3, 1, 4)
        q, k, v = qkv[0], qkv[1], qkv[2]
        scale = Dh ** -0.5
        scores = torch.einsum("bhqd,bhkd->bhqk", q, k) * scale
        p = _softmax(scores, axis=-1)
        o = torch.einsum("bhqk,bhkd->bhqd", p, v)
        return (lambda x, *d: x.permute(*d))(o, 0, 2, 1, 3).reshape(B, S, D) @ wo

    def _B_ref(x, w_gate, w_up, w_down):
        g = torch.einsum("bsd,df->bsf", x, w_gate)
        u = torch.einsum("bsd,df->bsf", x, w_up)
        h = _sigmoid(g) * u
        return torch.einsum("bsf,fd->bsd", h, w_down)

    x = A_x
    g = _sigmoid((x * gate_w).sum(-1, keepdims=True))
    a = _A_ref(x, A_wqkv, A_wo)
    b = _B_ref(x, B_w_gate, B_w_up, B_w_down)
    return g * a + (1 - g) * b
```

```python
import sys, struct, os

def f32hex(x):
    return "0x%08x" % struct.unpack("<I", struct.pack("<f", x))[0]

WS_Q = 0
WS_KV = 2 << 20
WS_H = 8 << 20
WS_O = 16 << 20
WS_B = 20 << 20
WS_G = 24 << 20
WS_SIZE = 256 << 20

LOG2E = 1.4426950408889634
QSCALE = (28 ** -0.5) * LOG2E


class Asm:
    def __init__(self):
        self.lines = []
    def __call__(self, s):
        for l in s.strip("\n").split("\n"):
            self.lines.append("  " + l.strip())
    def label(self, l):
        self.lines.append(l + ":")
    def raw(self, l):
        self.lines.append(l)
    stamps = False
    stamp_wg = 0
    def stamp(self, i, real=False):
        if not self.stamps:
            return
        self("s_waitcnt lgkmcnt(0)")
        self("%s s[%d:%d]" % ("s_memrealtime" if real else "s_memtime", 60 + 2 * i, 61 + 2 * i))
        self("s_waitcnt lgkmcnt(0)")
    wgtrace = False
    kidx = -1
    def stamp_init(self):
        if self.wgtrace:
            Asm.kidx += 1
            self("s_memrealtime s[84:85]")
        if not self.stamps:
            return
        for i in range(8):
            self("s_mov_b32 s%d, 0" % (60 + 2 * i))
    _sc = 0
    def stamp_flush(self):
        if self.wgtrace:
            self("s_waitcnt vmcnt(0) lgkmcnt(0)")
            self("s_memrealtime s[86:87]")
            self("s_load_dwordx2 s[88:89], s[0:1], 80")
            self("s_getreg_b32 s92, hwreg(HW_REG_XCC_ID)")
            self("s_getreg_b32 s93, hwreg(HW_REG_HW_ID)")
            self("s_waitcnt lgkmcnt(0)")
            self("s_and_b32 s89, s89, 0xffff")
            self("s_mov_b32 s90, 0x10000000")
            self("s_mov_b32 s91, 0x00020000")
            self("s_lshl_b32 s94, s2, 7")
            self("s_add_u32 s94, s94, 0x%x" % ((64 << 20) + Asm.kidx * 65536))
            self("v_lshrrev_b32 v253, 6, v0")
            self("v_lshlrev_b32 v253, 4, v253")
            self("v_mov_b32 v248, s84")
            self("v_mov_b32 v249, s86")
            self("v_mov_b32 v250, s92")
            self("v_mov_b32 v251, s93")
            self("buffer_store_dwordx4 v[248:251], v253, s[88:91], s94 offen")
        if not self.stamps:
            return
        Asm._sc += 1
        self("s_cmp_lg_u32 s2, %d" % self.stamp_wg)
        self("s_cbranch_scc1 Lstamp%d" % Asm._sc)
        self("s_load_dwordx2 s[80:81], s[0:1], 72")
        self("v_lshrrev_b32 v255, 6, v0")
        self("v_lshlrev_b32 v255, 5, v255")
        self("s_waitcnt lgkmcnt(0)")
        self("s_and_b32 s81, s81, 0xffff")
        self("s_mov_b32 s82, 256")
        self("s_mov_b32 s83, 0x00020000")
        for i in range(8):
            self("v_mov_b32 v254, s%d" % (60 + 2 * i))
            self("buffer_store_dword v254, v255, s[80:83], 0 offen offset:%d" % (4 * i))
            self("s_nop 1")
        self.label("Lstamp%d" % Asm._sc)
    def text(self):
        return "\n".join(self.lines) + "\n"


def vr(b, n):
    return "v[%d:%d]" % (b, b + n - 1)
def sr(b, n):
    return "s[%d:%d]" % (b, b + n - 1)


def kernel_head(a, name):
    a.raw(".globl %s" % name)
    a.raw(".p2align 8")
    a.raw(".type %s,@function" % name)
    a.label(name)


def kernel_desc(name, vgprs, sgprs=102):
    if Asm.stamps or Asm.wgtrace:
        vgprs = 256
    acc = (vgprs + 3) // 4 * 4
    return """.p2align 6
.amdhsa_kernel %s
  .amdhsa_next_free_vgpr %d
  .amdhsa_next_free_sgpr %d
  .amdhsa_accum_offset %d
  .amdhsa_group_segment_fixed_size 0
  .amdhsa_kernarg_size 88
  .amdhsa_user_sgpr_count 2
  .amdhsa_user_sgpr_kernarg_segment_ptr 1
  .amdhsa_system_sgpr_workgroup_id_x 1
.end_amdhsa_kernel
""" % (name, vgprs, sgprs, acc)


def make_srd(a, d, lo, hi, nbytes):
    a("s_mov_b32 s%d, s%d" % (d, lo))
    a("s_and_b32 s%d, s%d, 0xffff" % (d + 1, hi))
    a("s_mov_b32 s%d, 0x%x" % (d + 2, nbytes))
    a("s_mov_b32 s%d, 0x00020000" % (d + 3))


K1_NS = 5
K1_SLOT = 28 * 1024
K1_LDS = K1_NS * K1_SLOT
K1_NST = 14


def gen_k1(a):
    name = "k1_kernel"
    kernel_head(a, name)
    sX, sW, sWS = 16, 20, 24
    sWave, sJ, sMb, sMt = 28, 29, 30, 31
    sOffX, sOffW, sStepW = 32, 33, 34
    sL = [36, 37, 38, 39]
    sT0, sT1, sT2 = 40, 41, 42
    sRt = 43
    vLane = 1
    vD = [2, 3, 4, 5]
    vT = [6, 7, 8, 9, 10, 11]
    vXA = [[12, 13], [14, 15], [16, 17]]
    vWA = [18, 19, 20]
    vMA = [[21, 22], [23, 24], [25, 26]]
    vSt = 27
    FR = [32, 56]
    ACC = 80
    nv = ACC + 80

    a("s_cmp_ge_u32 s2, 256")
    a("s_cbranch_scc1 k1_exit")
    a.stamp_init(); a.stamp(0); a.stamp(6, True)
    a("s_load_dwordx4 s[4:7], s[0:1], 0")
    a("s_load_dwordx4 s[8:11], s[0:1], 32")
    a("s_load_dwordx2 s[12:13], s[0:1], 80")
    a("v_and_b32 v%d, 63, v0" % vLane)
    a("v_lshrrev_b32 v%d, 6, v0" % vT[0])
    a("s_and_b32 s%d, s2, 7" % sT0)
    a("v_readfirstlane_b32 s%d, v%d" % (sWave, vT[0]))
    a("s_lshr_b32 s%d, s2, 3" % sT1)
    a("s_lshl_b32 s%d, s%d, 1" % (sJ, sT0))
    a("s_and_b32 s%d, s%d, 1" % (sT2, sT1))
    a("s_add_u32 s%d, s%d, s%d" % (sJ, sJ, sT2))
    a("s_lshr_b32 s%d, s%d, 1" % (sMb, sT1))
    a("s_and_b32 s%d, s%d, 3" % (sMt, sWave))
    a("s_lshl_b32 s%d, s%d, 2" % (sRt, sMb))
    a("s_add_u32 s%d, s%d, s%d" % (sRt, sRt, sMt))
    l = vLane
    t0, t1, t2, t3, t4, t5 = vT
    a("v_and_b32 v%d, 31, v%d" % (t0, l))
    a("v_lshrrev_b32 v%d, 5, v%d" % (t1, l))
    a("v_bfe_u32 v%d, v%d, 2, 2" % (t2, l))
    a("v_xor_b32 v%d, v%d, v%d" % (t2, t2, t1))
    a("v_lshlrev_b32 v%d, 4, v%d" % (t2, t2))
    a("v_lshl_add_u32 v%d, v%d, 6, v%d" % (t2, t0, t2))
    a("s_lshl_b32 s%d, s%d, 11" % (sT0, sMt))
    a("v_add_u32 v%d, s%d, v%d" % (vXA[0][0], sT0, t2))
    a("v_xor_b32 v%d, 32, v%d" % (vXA[0][1], vXA[0][0]))
    a("v_bfe_u32 v%d, v%d, 2, 2" % (t2, l))
    a("v_lshl_add_u32 v%d, v%d, 3, v%d" % (t2, t1, t2))
    a("v_bfe_u32 v%d, v%d, 4, 1" % (t3, l))
    a("v_and_b32 v%d, 3, v%d" % (t4, l))
    a("v_lshlrev_b32 v%d, 3, v%d" % (t4, t4))
    a("v_lshl_add_u32 v%d, v%d, 6, v%d" % (t5, t2, t4))
    a("v_lshl_add_u32 v%d, v%d, 5, v%d" % (vWA[0], t3, t5))
    a("v_lshl_add_u32 v%d, v%d, 5, v%d" % (t5, t2, t4))
    a("v_lshl_add_u32 v%d, v%d, 10, v%d" % (t5, t3, t5))
    a("v_lshl_add_u32 v%d, v%d, 7, v%d" % (vMA[0][0], t3, t5))
    a("v_xor_b32 v%d, 128, v%d" % (vMA[0][1], vMA[0][0]))
    for g in (1, 2):
        off = g * 2 * K1_SLOT
        for f in (0, 1):
            a("v_add_u32 v%d, 0x%x, v%d" % (vXA[g][f], off, vXA[0][f]))
            a("v_add_u32 v%d, 0x%x, v%d" % (vMA[g][f], off, vMA[0][f]))
        a("v_add_u32 v%d, 0x%x, v%d" % (vWA[g], off, vWA[0]))
    a("v_lshlrev_b32 v%d, 4, v%d" % (vSt, l))
    a("s_waitcnt lgkmcnt(0)")
    make_srd(a, sX, 4, 5, 2048 * 896)
    make_srd(a, sWS, 12, 13, WS_SIZE)
    a("s_mov_b32 s%d, 0" % sOffX)
    a("s_mov_b32 s%d, 0" % sOffW)
    a("v_lshrrev_b32 v%d, 2, v%d" % (t0, l))
    a("v_and_b32 v%d, 3, v%d" % (t1, l))
    a("s_cmp_ge_u32 s%d, 4" % sWave)
    a("s_cbranch_scc1 k1_setupB")
    a("v_bfe_u32 v%d, v%d, 4, 2" % (t2, l))
    a("v_xor_b32 v%d, v%d, v%d" % (t2, t2, t1))
    a("v_lshlrev_b32 v%d, 4, v%d" % (t2, t2))
    a("s_lshl_b32 s%d, s%d, 5" % (sT0, sRt))
    a("v_add_u32 v%d, s%d, v%d" % (t3, sT0, t0))
    a("v_mul_u32_u24 v%d, 896, v%d" % (t3, t3))
    a("v_add_u32 v%d, v%d, v%d" % (vD[0], t3, t2))
    a("v_add_u32 v%d, %d, v%d" % (vD[1], 16 * 896, vD[0]))
    a("s_lshl_b32 s%d, s%d, 11" % (sL[0], sMt))
    a("s_add_u32 s%d, s%d, 1024" % (sL[1], sL[0]))
    a("s_and_b32 s%d, s%d, 1" % (sT0, sWave))
    a("s_cmp_eq_u32 s%d, 0" % sT0)
    a("s_cselect_b32 s%d, s8, s10" % sT1)
    a("s_cselect_b32 s%d, s9, s11" % sT2)
    make_srd(a, sW, sT1, sT2, 448 * 3584)
    a("s_mov_b32 s%d, %d" % (sStepW, 32 * 3584))
    a("s_mul_i32 s%d, s%d, 224" % (sT0, sJ))
    a("s_lshr_b32 s%d, s%d, 1" % (sT1, sWave))
    a("s_lshl_b32 s%d, s%d, 6" % (sT1, sT1))
    a("s_add_u32 s%d, s%d, s%d" % (sT0, sT0, sT1))
    a("v_mul_u32_u24 v%d, 3584, v%d" % (t3, t0))
    a("v_lshl_add_u32 v%d, v%d, 4, v%d" % (t3, t1, t3))
    a("v_add_u32 v%d, s%d, v%d" % (vD[2], sT0, t3))
    a("v_add_u32 v%d, %d, v%d" % (vD[3], 16 * 3584, vD[2]))
    a("s_lshl_b32 s%d, s%d, 11" % (sL[2], sWave))
    a("s_add_u32 s%d, s%d, 8192" % (sL[2], sL[2]))
    a("s_add_u32 s%d, s%d, 1024" % (sL[3], sL[2]))
    a("s_branch k1_mainA")
    a.label("k1_setupB")
    a("s_cmp_ge_u32 s%d, 6" % sWave)
    a("s_cbranch_scc1 k1_setupB2")
    a("s_cmp_eq_u32 s%d, 4" % sWave)
    a("s_cselect_b32 s%d, s8, s10" % sT1)
    a("s_cselect_b32 s%d, s9, s11" % sT2)
    make_srd(a, sW, sT1, sT2, 448 * 3584)
    a("s_mov_b32 s%d, %d" % (sStepW, 32 * 3584))
    a("s_mul_i32 s%d, s%d, 224" % (sT0, sJ))
    a("s_add_u32 s%d, s%d, 128" % (sT0, sT0))
    a("v_mul_u32_u24 v%d, 3584, v%d" % (t3, t0))
    a("v_lshl_add_u32 v%d, v%d, 4, v%d" % (t3, t1, t3))
    a("v_add_u32 v%d, s%d, v%d" % (vD[0], sT0, t3))
    a("v_add_u32 v%d, %d, v%d" % (vD[1], 16 * 3584, vD[0]))
    a("s_and_b32 s%d, s%d, 1" % (sT1, sWave))
    a("s_lshl_b32 s%d, s%d, 2" % (sT2, sT1))
    a("v_lshrrev_b32 v%d, 1, v%d" % (t3, l))
    a("v_xor_b32 v%d, s%d, v%d" % (t3, sT2, t3))
    a("v_mul_u32_u24 v%d, 3584, v%d" % (t3, t3))
    a("v_and_b32 v%d, 1, v%d" % (t4, l))
    a("v_lshl_add_u32 v%d, v%d, 4, v%d" % (t3, t4, t3))
    a("s_add_u32 s%d, s%d, 64" % (sT0, sT0))
    a("v_add_u32 v%d, s%d, v%d" % (vD[2], sT0, t3))
    a("s_lshl_b32 s%d, s%d, 11" % (sL[0], sT1))
    a("s_add_u32 s%d, s%d, %d" % (sL[0], sL[0], 8192 + 5 * 2048))
    a("s_add_u32 s%d, s%d, 1024" % (sL[1], sL[0]))
    a("s_lshl_b32 s%d, s%d, 10" % (sL[2], sT1))
    a("s_add_u32 s%d, s%d, %d" % (sL[2], sL[2], 8192 + 7 * 2048))
    a("s_branch k1_mainB")
    a.label("k1_setupB2")
    make_srd(a, sW, 6, 7, 448 * 2688)
    a("s_mov_b32 s%d, %d" % (sStepW, 32 * 2688))
    a("s_and_b32 s%d, s%d, 1" % (sT1, sWave))
    a("v_lshlrev_b32 v%d, 4, v%d" % (t4, t1))
    a("v_min_u32 v%d, 40, v%d" % (t4, t4))
    a("v_mul_u32_u24 v%d, 2688, v%d" % (t3, t0))
    a("v_add_u32 v%d, v%d, v%d" % (t3, t3, t4))
    a("s_mul_i32 s%d, s%d, 56" % (sT0, sJ))
    a("s_mul_i32 s%d, s%d, 1792" % (sT2, sT1))
    a("s_add_u32 s%d, s%d, s%d" % (sT2, sT2, sT0))
    a("v_add_u32 v%d, s%d, v%d" % (vD[0], sT2, t3))
    a("v_add_u32 v%d, %d, v%d" % (vD[1], 16 * 2688, vD[0]))
    a("s_mul_i32 s%d, s%d, %d" % (sT2, sT1, 16 * 2688))
    a("s_add_u32 s%d, s%d, s%d" % (sT2, sT2, sT0))
    a("s_add_u32 s%d, s%d, 896" % (sT2, sT2))
    a("v_add_u32 v%d, s%d, v%d" % (vD[2], sT2, t3))
    a("s_mul_i32 s%d, s%d, %d" % (sL[0], sT1, 5 * 2048))
    a("s_add_u32 s%d, s%d, %d" % (sL[0], sL[0], 8192 + 4 * 2048))
    a("s_add_u32 s%d, s%d, 1024" % (sL[1], sL[0]))
    a("s_lshl_b32 s%d, s%d, 10" % (sL[2], sT1))
    a("s_add_u32 s%d, s%d, %d" % (sL[2], sL[2], 8192 + 8 * 2048))
    a("s_branch k1_mainB")

    def dma(grp, stage):
        slot = (stage % K1_NS) * K1_SLOT
        out = []
        if os.environ.get("K1_NOLOAD"):
            return []
        if grp == 0:
            descs = [(0, sX, sOffX), (1, sX, sOffX), (2, sW, sOffW), (3, sW, sOffW)]
        else:
            descs = [(0, sW, sOffW), (1, sW, sOffW), (2, sW, sOffW)]
        for (i, srd, so) in descs:
            out.append("s_add_u32 m0, s%d, %d" % (sL[i], slot))
            out.append("s_nop 0")
            out.append("buffer_load_dwordx4 v%d, %s, s%d offen lds" % (vD[i], sr(srd, 4), so))
        if grp == 0:
            out.append("s_add_u32 s%d, s%d, 64" % (sOffX, sOffX))
        out.append("s_add_u32 s%d, s%d, s%d" % (sOffW, sOffW, sStepW))
        return out

    def reads(grp, h):
        if os.environ.get("K1_NOCOMP"):
            return []
        s, f = h // 2, h % 2
        slot = s % K1_NS
        g, so = slot // 2, (slot % 2) * K1_SLOT
        F = FR[h % 2]
        out = ["ds_read_b128 %s, v%d offset:%d" % (vr(F, 4), vXA[g][f], so)]
        tiles = [0, 1, 2, 3, 4] if grp == 0 else [5, 6, 7, 8, 9]
        for i, ti in enumerate(tiles):
            for half in (0, 1):
                d = F + 4 + 4 * i + 2 * half
                if ti == 7:
                    out.append("ds_read_b64_tr_b16 %s, v%d offset:%d" % (vr(d, 2), vMA[g][half], so + 8192 + 7 * 2048 + f * 512))
                else:
                    out.append("ds_read_b64_tr_b16 %s, v%d offset:%d" % (vr(d, 2), vWA[g], so + 8192 + ti * 2048 + f * 1024 + half * 256))
        return out

    def mfmas(grp, h):
        if os.environ.get("K1_NOCOMP"):
            return ["s_nop 0"] * 5
        F = FR[h % 2]
        out = []
        for i in range(5):
            acc = vr(ACC + 16 * i, 16)
            c = acc if h > 0 else "0"
            w = vr(F + 4 + 4 * i, 4)
            x = vr(F, 4)
            if grp == 1 and i == 4:
                out.append("v_mfma_f32_32x32x16_bf16 %s, %s, %s, %s" % (acc, x, w, c))
            else:
                out.append("v_mfma_f32_32x32x16_bf16 %s, %s, %s, %s" % (acc, w, x, c))
        return out

    def sig_mul(g, u, tmp):
        n = len(g)
        for i in range(n):
            a("v_mul_f32 v%d, %s, v%d" % (g[i], f32hex(-LOG2E), g[i]))
        for i in range(n):
            a("v_exp_f32 v%d, v%d" % (g[i], g[i]))
        for i in range(n):
            a("v_add_f32 v%d, 1.0, v%d" % (g[i], g[i]))
        for i in range(n):
            a("v_rcp_f32 v%d, v%d" % (g[i], g[i]))
        a("s_nop 0")
        for i in range(n):
            a("v_mul_f32 v%d, v%d, v%d" % (u[i], g[i], u[i]))

    def pack_store(src, dst, soff_reg, imm):
        for i in range(4):
            a("v_cvt_pk_bf16_f32 v%d, v%d, v%d" % (dst + i, src[2 * i], src[2 * i + 1]))
        a("buffer_store_dwordx4 %s, v%d, %s, s%d offen offset:%d" % (vr(dst, 4), vSt, sr(sWS, 4), soff_reg, imm))

    for grp in (0, 1):
        n = 4 if grp == 0 else 3
        a.label("k1_mainA" if grp == 0 else "k1_mainB")
        for s in range(K1_NS):
            for x in dma(grp, s):
                a(x)
        a.stamp(1)
        a("s_waitcnt vmcnt(%d)" % (n * (K1_NS - 1)))
        a("s_barrier")
        a.stamp(2)
        for x in reads(grp, 0):
            a(x)
        for h in range(2 * K1_NST):
            s = h // 2
            m = mfmas(grp, h)
            a("s_waitcnt lgkmcnt(0)")
            a(m[0])
            a(m[1])
            if h % 2 == 1 and s + 1 < K1_NST:
                after = min(s + K1_NS - 1, K1_NST - 1) - (s + 1)
                a("s_waitcnt vmcnt(%d)" % (n * after))
                a("s_barrier")
                if s + K1_NS < K1_NST:
                    for x in dma(grp, s + K1_NS):
                        a(x)
            if h + 1 < 2 * K1_NST:
                r = reads(grp, h + 1)
                for x in r[:4]:
                    a(x)
                a(m[2])
                for x in r[4:8]:
                    a(x)
                a(m[3])
                for x in r[8:]:
                    a(x)
                a(m[4])
            else:
                a(m[2]); a(m[3]); a(m[4])
        a.stamp(3)
        T = [list(range(ACC + 16 * i, ACC + 16 * i + 16)) for i in range(5)]
        P = FR[0]
        a("s_mul_i32 s%d, s%d, 112" % (sT0, sRt))
        a("s_mul_i32 s%d, s%d, 7" % (sT1, sJ))
        a("s_add_u32 s%d, s%d, s%d" % (sT0, sT0, sT1))
        a("s_lshl_b32 s%d, s%d, 10" % (sT0, sT0))
        a("s_add_u32 s%d, s%d, 0x%x" % (sT0, sT0, WS_H))
        a("s_lshl_b32 s%d, s%d, 6" % (sT1, sJ))
        a("s_add_u32 s%d, s%d, s%d" % (sT1, sT1, sRt))
        a("s_nop 7")
        if grp == 0:
            a("s_lshl_b32 s%d, s%d, 11" % (sT1, sT1))
            a("s_add_u32 s%d, s%d, 0x%x" % (sT1, sT1, WS_Q))
            sig_mul(T[0], T[1], None)
            pack_store(T[1][0:8], P + 0, sT0, 0)
            pack_store(T[1][8:16], P + 4, sT0, 1024)
            sig_mul(T[2], T[3], None)
            pack_store(T[3][0:8], P + 8, sT0, 2048)
            pack_store(T[3][8:16], P + 12, sT0, 3072)
            q = T[4]
            for i in range(16):
                a("v_mul_f32 v%d, %s, v%d" % (q[i], f32hex(QSCALE), q[i]))
            a("s_mov_b32 exec_hi, 0")
            for i in range(12, 16):
                a("v_mov_b32 v%d, 0" % q[i])
            a("s_mov_b64 exec, -1")
            pack_store(q[0:8], P + 16, sT1, 0)
            pack_store(q[8:16], P + 20, sT1, 1024)
        else:
            a("s_lshl_b32 s%d, s%d, 12" % (sT1, sT1))
            a("s_add_u32 s%d, s%d, 0x%x" % (sT1, sT1, WS_KV))
            a("s_add_u32 s%d, s%d, 4096" % (sT0, sT0))
            sig_mul(T[0], T[1], None)
            pack_store(T[1][0:8], P + 0, sT0, 0)
            pack_store(T[1][8:16], P + 4, sT0, 1024)
            sig_mul(T[2][0:8], T[2][8:16], None)
            pack_store(T[2][8:16], P + 8, sT0, 2048)
            k = T[3]
            a("s_mov_b32 exec_hi, 0")
            a("v_mov_b32 v%d, 1.0" % k[12])
            a("v_mov_b32 v%d, 1.0" % k[13])
            a("v_mov_b32 v%d, 1.0" % k[14])
            a("v_mov_b32 v%d, 0" % k[15])
            a("s_mov_b64 exec, -1")
            pack_store(k[0:8], P + 12, sT1, 0)
            pack_store(k[8:16], P + 16, sT1, 1024)
            v = T[4]
            a("s_mov_b32 s%d, 0x0e000000" % sT2)
            a("s_mov_b32 exec_lo, s%d" % sT2)
            a("s_mov_b32 exec_hi, s%d" % sT2)
            for i in range(16):
                a("v_mov_b32 v%d, 0" % v[i])
            a("s_mov_b32 s%d, 0x01000000" % sT2)
            a("s_mov_b32 exec_lo, s%d" % sT2)
            a("s_mov_b32 exec_hi, s%d" % sT2)
            for i in range(16):
                a("v_mov_b32 v%d, 1.0" % v[i])
            a("s_mov_b64 exec, -1")
            pack_store(v[0:8], P + 20, sT1, 2048)
            pack_store(v[8:16], P + 24, sT1, 3072)
        a.stamp(4)
        if a.stamps:
            a("s_waitcnt vmcnt(0)")
        a.stamp(5); a.stamp(7, True)
        a.stamp_flush()
        a("s_endpgm")
    a.label("k1_exit")
    a("s_endpgm")
    return ("; @launch kernel=%s grid=(256,1,1) block=(512,1,1) lds=%d" % (name, K1_LDS), kernel_desc(name, nv))


def main():
    out = sys.argv[1]
    which = sys.argv[2] if len(sys.argv) > 2 else "123"
    import os
    if os.environ.get("STAMPS"):
        import gen
        Asm.stamps = True; gen.Asm.stamps = True
    a = Asm()
    a.raw('.amdgcn_target "amdgcn-amd-amdhsa--gfx950"')
    a.raw(".text")
    hdr, descs = [], []
    gens = {"1": gen_k1}
    try:
        from gen_k2 import gen_k2
        gens["2"] = gen_k2
        from gen_k3 import gen_k3
        gens["3"] = gen_k3
    except ImportError:
        pass
    for c in which:
        h, d = gens[c](a)
        hdr.append(h)
        descs.append(d)
    txt = "\n".join(hdr) + "\n" + a.text() + '.section .rodata,"a"\n' + "".join(descs)
    open(out, "w").write(txt)


if __name__ == "__main__":
    main()
```

```python
from gen import *

XS, XSZ = 3, 16384
WSN, WSZ = 5, 20480
WBASE = XS * XSZ
K1_LDS = WBASE + WSN * WSZ
NST = 14


class Cnt:
    def __init__(self, a, name):
        self.a, self.name, self.q = a, name, []
    def issue(self, tag):
        self.q.append(tag)
    def wait(self, tag):
        idx = [i for i, t in enumerate(self.q) if t == tag]
        if not idx:
            return
        idx = max(idx)
        n = len(self.q) - 1 - idx
        self.a("s_waitcnt %s(%d)" % (self.name, n))
        self.q = self.q[idx + 1:]


def gen_k1(a, opt={}):
    name = "k1_kernel"
    kernel_head(a, name)
    sX, sG, sU, sQ, sWS = 16, 20, 24, 28, 32
    sWave, sType, sMb, sCg, sRot = 36, 37, 38, 39, 40
    sT0, sT1, sT2, sT3 = 41, 42, 43, 44
    sOffX, sOffW, sOffQ, sL = 45, 46, 47, 48
    sMh, sNh, sRt = 49, 50, 51
    sXd, sWd = 52, 53
    NOCOMP = os.environ.get("K1_NOCOMP")
    NOLOAD = os.environ.get("K1_NOLOAD")
    l = 1
    t0, t1, t2, t3, t4, t5 = 2, 3, 4, 5, 6, 7

    a("s_cmp_ge_u32 s2, 256")
    a("s_cbranch_scc1 k1_exit")
    a.stamp_init(); a.stamp(0); a.stamp(6, True)
    a("s_load_dwordx4 s[4:7], s[0:1], 0")
    a("s_load_dwordx4 s[8:11], s[0:1], 32")
    a("s_load_dwordx2 s[12:13], s[0:1], 80")
    a("v_and_b32 v%d, 63, v0" % l)
    a("v_lshrrev_b32 v%d, 6, v0" % t0)
    a("s_and_b32 s%d, s2, 7" % sCg)
    a("v_readfirstlane_b32 s%d, v%d" % (sWave, t0))
    a("s_lshr_b32 s%d, s2, 3" % sT0)
    a("s_and_b32 s%d, s%d, 1" % (sType, sT0))
    a("s_lshr_b32 s%d, s%d, 1" % (sMb, sT0))
    a("s_cmp_ge_u32 s%d, 4" % sWave)
    a("s_cbranch_scc0 k1_comp")

    a("s_sub_u32 s%d, s%d, 4" % (sL, sWave))
    a("s_mul_i32 s%d, s%d, 3" % (sT0, sType))
    a("s_add_u32 s%d, s%d, s%d" % (sRot, sMb, sT0))
    rx = opt.get("rx", 0)
    if rx:
        a("s_mul_i32 s%d, s%d, %d" % (sT0, sCg, rx))
        a("s_add_u32 s%d, s%d, s%d" % (sRot, sRot, sT0))
    a("s_mul_i32 s%d, s%d, 37" % (sT0, sRot))
    a("s_lshr_b32 s%d, s%d, 8" % (sT0, sT0))
    a("s_mul_i32 s%d, s%d, 7" % (sT0, sT0))
    a("s_sub_u32 s%d, s%d, s%d" % (sRot, sRot, sT0))
    if opt.get("norot"):
        a("s_mov_b32 s%d, 0" % sRot)
    a("s_lshl_b32 s%d, s%d, 7" % (sOffX, sRot))
    a("s_mul_i32 s%d, s%d, %d" % (sOffW, sRot, 64 * 3584))
    a("s_mul_i32 s%d, s%d, %d" % (sOffQ, sRot, 64 * 2688))
    vX = [8, 9, 10, 11]
    vP = [12, 13, 14, 15, 16]
    a("v_lshrrev_b32 v%d, 3, v%d" % (t0, l))
    a("v_and_b32 v%d, 7, v%d" % (t1, l))
    a("v_lshrrev_b32 v%d, 4, v%d" % (t2, l))
    a("v_xor_b32 v%d, v%d, v%d" % (t2, t2, t1))
    a("s_lshl_b32 s%d, s%d, 7" % (sT0, sMb))
    a("s_lshl_b32 s%d, s%d, 5" % (sT1, sL))
    a("s_add_u32 s%d, s%d, s%d" % (sT0, sT0, sT1))
    a("v_add_u32 v%d, s%d, v%d" % (t3, sT0, t0))
    a("v_mul_u32_u24 v%d, 896, v%d" % (t3, t3))
    a("v_lshl_add_u32 v%d, v%d, 4, v%d" % (vX[0], t2, t3))
    a("v_xor_b32 v%d, 4, v%d" % (t2, t2))
    a("v_lshl_add_u32 v%d, v%d, 4, v%d" % (vX[1], t2, t3))
    a("v_add_u32 v%d, %d, v%d" % (vX[1], 8 * 896, vX[1]))
    a("v_add_u32 v%d, %d, v%d" % (vX[2], 16 * 896, vX[0]))
    a("v_add_u32 v%d, %d, v%d" % (vX[3], 16 * 896, vX[1]))
    a("s_lshl_b32 s%d, s%d, 12" % (sXd, sL))
    a("s_cmp_eq_u32 s%d, 1" % sType)
    a("s_cbranch_scc1 k1_ldA")

    def loader(typ):
        vm = Cnt(a, "vmcnt")
        def xi(b, i):
            out = ["s_add_u32 m0, s%d, %d" % (sXd, (b % XS) * XSZ + i * 1024), "s_nop 0",
                   "buffer_load_dwordx4 v%d, %s, s%d offen lds" % (vX[i], sr(sX, 4), sOffX)]
            if i == 3:
                out += ["s_add_u32 s%d, s%d, 128" % (sOffX, sOffX),
                        "s_cmp_eq_u32 s%d, 896" % sOffX,
                        "s_cselect_b32 s%d, 0, s%d" % (sOffX, sOffX)]
            return out
        def wi(s, p):
            slot = WBASE + (s % WSN) * WSZ
            if typ == 0:
                out = ["s_add_u32 m0, s%d, %d" % (sWd, slot + p * 1024), "s_nop 0",
                       "buffer_load_dwordx4 v%d, %s, s%d offen lds" % (vP[p], sr(sG, 4), sOffW)]
            else:
                if p < 2:
                    out = ["s_add_u32 m0, s%d, %d" % (sWd, slot + p * 4096), "s_nop 0",
                           "buffer_load_dwordx4 v%d, %s, s%d offen lds" % (vP[0], sr(sG if p == 0 else sU, 4), sOffW)]
                else:
                    out = ["s_add_u32 m0, s%d, %d" % (sWd, slot + p * 4096), "s_nop 0",
                           "buffer_load_dwordx4 v%d, %s, s%d offen lds" % (vP[p - 1], sr(sQ, 4), sOffQ)]
            if p == 4:
                out += ["s_add_u32 s%d, s%d, %d" % (sOffW, sOffW, 32 * 3584),
                        "s_cmp_eq_u32 s%d, %d" % (sOffW, 448 * 3584),
                        "s_cselect_b32 s%d, 0, s%d" % (sOffW, sOffW)]
                if typ == 1:
                    out += ["s_add_u32 s%d, s%d, %d" % (sOffQ, sOffQ, 32 * 2688),
                            "s_cmp_eq_u32 s%d, %d" % (sOffQ, 448 * 2688),
                            "s_cselect_b32 s%d, 0, s%d" % (sOffQ, sOffQ)]
            return out
        items = []
        for s in range(NST):
            if s % 2 == 0:
                b = s // 2
                for i in range(4):
                    items.append((s, 2 * b - 4 if b >= XS else -1, xi(b, i)))
            for p in range(5):
                items.append((s, s - 3 if s >= WSN else -1, wi(s, p)))
        pro = opt.get("pro", 14)
        per = opt.get("per", 9)
        pos = 0
        for t in range(NST):
            budget = pro if t == 0 else per
            n = 0
            while pos < len(items) and (n < budget or items[pos][0] <= t) and items[pos][1] <= t - 1:
                if not NOLOAD:
                    for x in items[pos][2]:
                        a(x)
                    vm.issue(items[pos][0])
                pos += 1
                n += 1
            assert pos >= len(items) or items[pos][0] > t
            if t == 0:
                a.stamp(1)
            vm.wait(t)
            if t == 0:
                a.stamp(2)
            if t == 7:
                a.stamp(3)
            a("s_barrier")
        assert pos == len(items)
        a.stamp(4); a.stamp(5); a.stamp(7, True)
        a.stamp_flush()
        a("s_endpgm")

    for p in range(5):
        a("v_add_u32 v%d, %d, v%d" % (t0, 64 * p, l))
        a("v_mul_u32_u24 v%d, 3277, v%d" % (t1, t0))
        a("v_lshrrev_b32 v%d, 16, v%d" % (t1, t1))
        a("v_mul_u32_u24 v%d, 20, v%d" % (t2, t1))
        a("v_sub_u32 v%d, v%d, v%d" % (t2, t0, t2))
        a("v_lshrrev_b32 v%d, 3, v%d" % (t3, t1))
        a("v_lshlrev_b32 v%d, 1, v%d" % (t3, t3))
        a("v_xor_b32 v%d, v%d, v%d" % (t2, t2, t3))
        a("v_mul_u32_u24 v%d, 3584, v%d" % (t1, t1))
        a("v_lshl_add_u32 v%d, v%d, 4, v%d" % (vP[p], t2, t1))
    a("s_lshr_b32 s%d, s%d, 1" % (sT0, sL))
    a("s_and_b32 s%d, s%d, 1" % (sT1, sL))
    a("s_mul_i32 s%d, s%d, %d" % (sT2, sT0, 16 * 3584))
    a("s_mul_i32 s%d, s%d, 320" % (sT3, sCg))
    a("s_add_u32 s%d, s%d, s%d" % (sT2, sT2, sT3))
    for p in range(5):
        a("v_add_u32 v%d, s%d, v%d" % (vP[p], sT2, vP[p]))
    a("s_mul_i32 s%d, s%d, 10240" % (sWd, sT1))
    a("s_mul_i32 s%d, s%d, 5120" % (sT0, sT0))
    a("s_add_u32 s%d, s%d, s%d" % (sWd, sWd, sT0))
    a("s_cmp_eq_u32 s%d, 0" % sT1)
    a("s_waitcnt lgkmcnt(0)")
    a("s_cselect_b32 s%d, s8, s10" % sT2)
    a("s_cselect_b32 s%d, s9, s11" % sT3)
    make_srd(a, sX, 4, 5, 2048 * 896)
    make_srd(a, sG, sT2, sT3, 448 * 3584)
    loader(0)
    a.label("k1_ldA")
    a("v_bfe_u32 v%d, v%d, 4, 1" % (t2, l))
    a("s_and_b32 s%d, s%d, 1" % (sT0, sL))
    a("s_lshl_b32 s%d, s%d, 1" % (sT0, sT0))
    a("v_or_b32 v%d, s%d, v%d" % (t2, sT0, t2))
    a("v_lshlrev_b32 v%d, 1, v%d" % (t2, t2))
    a("v_xor_b32 v%d, v%d, v%d" % (t2, t2, t1))
    a("s_lshl_b32 s%d, s%d, 3" % (sT0, sL))
    a("v_add_u32 v%d, s%d, v%d" % (t0, sT0, t0))
    a("v_mul_u32_u24 v%d, 3584, v%d" % (t3, t0))
    a("v_lshl_add_u32 v%d, v%d, 4, v%d" % (t3, t2, t3))
    a("s_lshl_b32 s%d, s%d, 7" % (sT0, sCg))
    a("s_add_u32 s%d, s%d, 2560" % (sT0, sT0))
    a("v_add_u32 v%d, s%d, v%d" % (vP[0], sT0, t3))
    a("v_min_u32 v%d, 6, v%d" % (t2, t2))
    a("v_mul_u32_u24 v%d, 2688, v%d" % (t3, t0))
    a("v_lshl_add_u32 v%d, v%d, 4, v%d" % (t3, t2, t3))
    a("s_mul_i32 s%d, s%d, 112" % (sT0, sCg))
    a("v_add_u32 v%d, s%d, v%d" % (vP[1], sT0, t3))
    a("v_add_u32 v%d, 896, v%d" % (vP[2], vP[1]))
    a("v_add_u32 v%d, 1792, v%d" % (vP[3], vP[1]))
    a("s_lshl_b32 s%d, s%d, 10" % (sWd, sL))
    a("s_waitcnt lgkmcnt(0)")
    make_srd(a, sX, 4, 5, 2048 * 896)
    make_srd(a, sG, 8, 9, 448 * 3584)
    make_srd(a, sU, 10, 11, 448 * 3584)
    make_srd(a, sQ, 6, 7, 448 * 2688)
    loader(1)

    a.label("k1_comp")
    vXA = [8, 9]
    vWA = [[10, 11, 12, 13], [14, 15, 16, 17]]
    vH, vK = 18, 19
    vN, vGq = 20, 21
    XF = [24, 40]
    WF = 56
    NW, PD = 4, 3
    ACC = 72
    nv = ACC + 160
    a("s_and_b32 s%d, s%d, 1" % (sMh, sWave))
    a("s_lshr_b32 s%d, s%d, 1" % (sNh, sWave))
    a("v_and_b32 v%d, 15, v%d" % (vN, l))
    a("v_lshrrev_b32 v%d, 4, v%d" % (vGq, l))
    a("v_lshrrev_b32 v%d, 1, v%d" % (t0, vN))
    a("v_xor_b32 v%d, v%d, v%d" % (t0, t0, vGq))
    a("v_lshlrev_b32 v%d, 4, v%d" % (t0, t0))
    a("v_lshl_add_u32 v%d, v%d, 7, v%d" % (t0, vN, t0))
    a("s_lshl_b32 s%d, s%d, 13" % (sT0, sMh))
    a("v_add_u32 v%d, s%d, v%d" % (vXA[0], sT0, t0))
    a("v_xor_b32 v%d, 64, v%d" % (vXA[1], vXA[0]))
    a("v_bfe_u32 v%d, v%d, 2, 2" % (t0, l))
    a("v_lshl_add_u32 v%d, v%d, 3, v%d" % (t1, vGq, t0))
    a("v_and_b32 v%d, 3, v%d" % (t2, l))
    a("v_lshlrev_b32 v%d, 3, v%d" % (t2, t2))
    a("v_and_b32 v%d, 1, v%d" % (t3, vGq))
    a("v_lshrrev_b32 v%d, 1, v%d" % (t4, vGq))
    a("v_lshlrev_b32 v%d, 10, v%d" % (t4, t4))
    a("v_lshl_add_u32 v%d, v%d, 9, v%d" % (t4, t3, t4))
    a("v_lshl_add_u32 v%d, v%d, 4, v%d" % (vH, vN, t4))
    a("v_and_b32 v%d, 8, v%d" % (t5, vN))
    a("v_lshl_add_u32 v%d, v%d, 4, v%d" % (vK, t5, vH))
    a("s_lshl_b32 s%d, s%d, 2" % (sRt, sMb))
    a("s_lshl_b32 s%d, s%d, 1" % (sT0, sMh))
    a("s_add_u32 s%d, s%d, s%d" % (sRt, sRt, sT0))
    a("s_cmp_eq_u32 s%d, 1" % sType)
    a("s_cbranch_scc1 k1_compA")

    def main(typ):
        lg = Cnt(a, "lgkmcnt")
        def wread(G):
            s, i = G // 10, G % 10
            slot = s % WSN
            win = 0 if slot < 3 else 1
            so = (slot - 3 * win) * WSZ
            d = WF + 4 * (G % NW)
            if typ == 0:
                sub, m = i // 2, i % 2
                if sub < 4:
                    v, off = vWA[win][sub % 2], so + m * 10240 + sub * 32
                else:
                    v, off = vWA[win][2], so + m * 10240
                step = 1280
            else:
                if i < 4:
                    sub, m = i // 2, i % 2
                    v, off = vWA[win][sub], so + m * 4096
                else:
                    sec, sub = (i - 4) // 2, (i - 4) % 2
                    v, off = vWA[win][2 + sub], so + (2 + sec) * 4096
                step = 512
            if NOCOMP:
                return
            a("ds_read_b64_tr_b16 %s, v%d offset:%d" % (vr(d, 2), v, off)); lg.issue(("w", G))
            a("ds_read_b64_tr_b16 %s, v%d offset:%d" % (vr(d + 2, 2), v, off + step)); lg.issue(("w", G))
        def xread(s, r):
            if NOCOMP:
                return
            a("ds_read_b128 %s, v%d offset:%d" % (vr(XF[s % 2] + 4 * r, 4), vXA[s % 2], ((s // 2) % XS) * XSZ + r * 2048))
            lg.issue(("x", s))
        a.stamp(1)
        a("s_barrier")
        a.stamp(2)
        for r in range(4):
            xread(0, r)
        for G in range(PD):
            wread(G)
        for G in range(10 * NST):
            s, i = G // 10, G % 10
            if i == 0:
                lg.wait(("x", s))
            lg.wait(("w", G))
            for r in range(4):
                acc = vr(ACC + 16 * i + 4 * r, 4)
                w, x = vr(WF + 4 * (G % NW), 4), vr(XF[s % 2] + 4 * r, 4)
                c = acc if s > 0 else "0"
                if NOCOMP:
                    a("s_nop 3")
                elif typ == 1 and i >= 8:
                    a("v_mfma_f32_16x16x32_bf16 %s, %s, %s, %s" % (acc, x, w, c))
                else:
                    a("v_mfma_f32_16x16x32_bf16 %s, %s, %s, %s" % (acc, w, x, c))
                if r == 0 and i == 6 and s + 1 < NST:
                    a("s_barrier")
                if r == 1 and G + PD < 10 * NST:
                    wread(G + PD)
                if r >= 2 and i in (6, 7) and s + 1 < NST:
                    xread(s + 1, 2 * (i - 6) + r - 2)
        a.stamp(3)

    def T(i, r):
        return list(range(ACC + 16 * i + 4 * r, ACC + 16 * i + 4 * r + 4))

    def sig_mul(g, u):
        n = len(g)
        for i in range(n):
            a("v_mul_f32 v%d, %s, v%d" % (g[i], f32hex(-LOG2E), g[i]))
        for i in range(n):
            a("v_exp_f32 v%d, v%d" % (g[i], g[i]))
        for i in range(n):
            a("v_add_f32 v%d, 1.0, v%d" % (g[i], g[i]))
        for i in range(n):
            a("v_rcp_f32 v%d, v%d" % (g[i], g[i]))
        a("s_nop 0")
        for i in range(n):
            a("v_mul_f32 v%d, v%d, v%d" % (u[i], g[i], u[i]))

    def pack(dst, src):
        for i in range(len(src) // 2):
            a("v_cvt_pk_bf16_f32 v%d, v%d, v%d" % (dst + i, src[2 * i], src[2 * i + 1]))

    STP = opt.get("stpol", "")
    def store(src, n, v, soff, imm):
        a("buffer_store_dwordx%d %s, v%d, %s, s%d offen offset:%d %s" % (n, vr(src, n), v, sr(sWS, 4), soff, imm, STP))

    def fin():
        a.stamp(4)
        if a.stamps:
            a("s_waitcnt vmcnt(0)")
        a.stamp(5); a.stamp(7, True)
        a.stamp_flush()
        a("s_endpgm")

    PKR = XF[0]
    a("v_mul_u32_u24 v%d, 320, v%d" % (t1, t1))
    a("v_add_u32 v%d, v%d, v%d" % (t1, t1, t2))
    a("v_lshlrev_b32 v%d, 5, v%d" % (t3, t3))
    a("s_lshl_b32 s%d, s%d, 7" % (sT0, sNh))
    a("s_add_u32 s%d, s%d, %d" % (sT0, sT0, WBASE))
    a("v_add_u32 v%d, s%d, v%d" % (t4, sT0, t1))
    a("v_add_u32 v%d, v%d, v%d" % (vWA[0][0], t4, t3))
    a("v_sub_u32 v%d, v%d, v%d" % (vWA[0][1], t4, t3))
    a("s_lshl_b32 s%d, s%d, 5" % (sT0, sNh))
    a("v_xor_b32 v%d, s%d, v%d" % (t3, sT0, t3))
    a("v_add_u32 v%d, v%d, v%d" % (t3, t3, t1))
    a("v_add_u32 v%d, %d, v%d" % (vWA[0][2], WBASE + 256, t3))
    for k in range(3):
        a("v_add_u32 v%d, %d, v%d" % (vWA[1][k], 3 * WSZ, vWA[0][k]))
    a("s_waitcnt lgkmcnt(0)")
    make_srd(a, sWS, 12, 13, WS_SIZE)
    a("s_mul_i32 s%d, s%d, 112" % (sT0, sRt))
    a("s_mul_i32 s%d, s%d, 10" % (sT1, sCg))
    a("s_add_u32 s%d, s%d, s%d" % (sT0, sT0, sT1))
    a("s_lshl_b32 s%d, s%d, 10" % (sT0, sT0))
    a("s_add_u32 s%d, s%d, 0x%x" % (sT0, sT0, WS_H))
    a("s_lshl_b32 s%d, s%d, 3" % (sT1, sNh))
    a("s_add_u32 s%d, s%d, s%d" % (sT2, sT0, sT1))
    a("s_add_u32 s%d, s%d, 8192" % (sT2, sT2))
    a("s_lshl_b32 s%d, s%d, 12" % (sT1, sNh))
    a("s_add_u32 s%d, s%d, s%d" % (sT0, sT0, sT1))
    a("s_add_u32 s%d, s%d, %d" % (sT1, sT0, 112 * 1024))
    a("s_add_u32 s%d, s%d, %d" % (sT3, sT2, 112 * 1024))
    main(0)
    a("s_nop 4")
    k = 0
    for pr in range(2):
        for rr in range(2):
            g, u = [], []
            for r in (2 * rr, 2 * rr + 1):
                g += T(4 * pr, r) + T(4 * pr + 2, r)
                u += T(4 * pr + 1, r) + T(4 * pr + 3, r)
            sig_mul(g, u)
            for q in range(2):
                d = PKR + 4 * (k % 12); k += 1
                pack(d, u[8 * q: 8 * q + 8])
                store(d, 4, vH, sT0 if rr == 0 else sT1, pr * 2048 + q * 256)
    g, u = [], []
    for r in range(4):
        g += T(8, r); u += T(9, r)
    sig_mul(g, u)
    for r in range(4):
        d = PKR + 32 + 2 * r
        pack(d, u[4 * r: 4 * r + 4])
        store(d, 2, vH, sT2 if r < 2 else sT3, (r & 1) * 256)
    fin()

    a.label("k1_compA")
    a("v_lshrrev_b32 v%d, 1, v%d" % (t0, t0))
    a("v_lshl_add_u32 v%d, v%d, 1, v%d" % (t0, t3, t0))
    a("v_lshlrev_b32 v%d, 7, v%d" % (t1, t1))
    a("v_add_u32 v%d, %d, v%d" % (t1, WBASE, t1))
    a("s_lshl_b32 s%d, s%d, 1" % (sT0, sNh))
    a("v_xor_b32 v%d, s%d, v%d" % (t3, sT0, t0))
    a("v_lshl_add_u32 v%d, v%d, 5, v%d" % (t3, t3, t1))
    a("v_add_u32 v%d, v%d, v%d" % (vWA[0][0], t3, t2))
    a("v_xor_b32 v%d, 32, v%d" % (vWA[0][1], vWA[0][0]))
    a("s_mul_i32 s%d, s%d, 56" % (sT0, sNh))
    for sub in range(2):
        a("v_add_u32 v%d, s%d, v%d" % (t3, sT0, t2))
        if sub:
            a("v_add_u32 v%d, 32, v%d" % (t3, t3))
        a("v_lshrrev_b32 v%d, 5, v%d" % (t4, t3))
        a("v_xor_b32 v%d, v%d, v%d" % (t4, t4, t0))
        a("v_and_b32 v%d, 31, v%d" % (t3, t3))
        a("v_lshl_add_u32 v%d, v%d, 5, v%d" % (t3, t4, t3))
        a("v_add_u32 v%d, v%d, v%d" % (vWA[0][2 + sub], t3, t1))
    for k in range(4):
        a("v_add_u32 v%d, %d, v%d" % (vWA[1][k], 3 * WSZ, vWA[0][k]))
    a("s_waitcnt lgkmcnt(0)")
    make_srd(a, sWS, 12, 13, WS_SIZE)
    a("s_mul_i32 s%d, s%d, 112" % (sT0, sRt))
    a("s_lshl_b32 s%d, s%d, 1" % (sT1, sCg))
    a("s_add_u32 s%d, s%d, s%d" % (sT1, sT1, sNh))
    a("s_lshl_b32 s%d, s%d, 1" % (sT2, sT1))
    a("s_add_u32 s%d, s%d, s%d" % (sT0, sT0, sT2))
    a("s_add_u32 s%d, s%d, 80" % (sT0, sT0))
    a("s_lshl_b32 s%d, s%d, 10" % (sT0, sT0))
    a("s_add_u32 s%d, s%d, 0x%x" % (sT0, sT0, WS_H))
    a("s_lshl_b32 s%d, s%d, 6" % (sT1, sT1))
    a("s_add_u32 s%d, s%d, s%d" % (sT1, sT1, sRt))
    a("s_lshl_b32 s%d, s%d, 11" % (sT2, sT1))
    a("s_add_u32 s%d, s%d, 0x%x" % (sT2, sT2, WS_Q))
    a("s_lshl_b32 s%d, s%d, 12" % (sT3, sT1))
    a("s_add_u32 s%d, s%d, 0x%x" % (sT3, sT3, WS_KV))
    a("s_add_u32 s%d, s%d, %d" % (sT1, sT0, 112 * 1024))
    sKV1 = sOffX
    a("s_add_u32 s%d, s%d, 4096" % (sKV1, sT3))
    main(1)
    for r in range(4):
        for x in T(4, r) + T(5, r):
            a("v_mul_f32 v%d, %s, v%d" % (x, f32hex(QSCALE), x))
    a("s_mov_b32 exec_lo, 0")
    a("s_mov_b32 exec_hi, 0xffff0000")
    for r in range(4):
        q, kk = T(5, r), T(7, r)
        for i in range(4):
            a("v_mov_b32 v%d, 0" % q[i])
        for i in range(3):
            a("v_mov_b32 v%d, 1.0" % kk[i])
        a("v_mov_b32 v%d, 0" % kk[3])
    a("s_mov_b64 exec, -1")
    QF, KF = PKR, PKR + 16
    for r in range(4):
        pack(QF + 4 * r, T(4, r) + T(5, r))
        pack(KF + 4 * r, T(6, r) + T(7, r))
    a("s_nop 1")
    for r in range(4):
        a("v_mfma_f32_16x16x32_bf16 %s, %s, %s, 0" % (vr(T(4, r)[0], 4), vr(KF + 4 * r, 4), vr(QF + 4 * r, 4)))
    for r in range(4):
        store(KF + 4 * r, 4, vK, sT3 if r < 2 else sKV1, (r & 1) * 128)
    a("s_mov_b32 exec_lo, 0xe000e000")
    a("s_mov_b32 exec_hi, 0xe000e000")
    for r in range(4):
        for x in T(9, r):
            a("v_mov_b32 v%d, 0" % x)
    a("s_mov_b32 exec_lo, 0x10001000")
    a("s_mov_b32 exec_hi, 0x10001000")
    for r in range(4):
        for x in T(9, r):
            a("v_mov_b32 v%d, 1.0" % x)
    a("s_mov_b64 exec, -1")
    VF = PKR + 32
    for rho in range(2):
        for c in range(2):
            d = VF + 8 * rho + 4 * c
            pack(d, T(8 + c, 2 * rho) + T(8 + c, 2 * rho + 1))
            store(d, 4, vH, sT3 if rho == 0 else sKV1, 2048 + c * 256)
    M = [T(5, r)[0] for r in range(4)]
    A1 = [T(5, r)[1] for r in range(4)]
    A2 = [T(5, r)[2] for r in range(4)]
    A3 = [T(5, r)[3] for r in range(4)]
    for r in range(4):
        s4 = T(4, r)
        a("v_max3_f32 v%d, v%d, v%d, v%d" % (M[r], s4[0], s4[1], s4[2]))
    for r in range(4):
        a("v_max_f32 v%d, v%d, v%d" % (M[r], M[r], T(4, r)[3]))
    for r in range(4):
        a("v_mov_b32 v%d, v%d" % (A1[r], M[r]))
    a("s_nop 0")
    for r in range(4):
        a("v_permlane16_swap_b32 v%d, v%d" % (M[r], A1[r]))
    for r in range(4):
        a("v_max_f32 v%d, v%d, v%d" % (M[r], M[r], A1[r]))
    for r in range(4):
        a("v_mov_b32 v%d, v%d" % (A1[r], M[r]))
    a("s_nop 0")
    for r in range(4):
        a("v_permlane32_swap_b32 v%d, v%d" % (M[r], A1[r]))
    for r in range(4):
        a("v_max_f32 v%d, v%d, v%d" % (M[r], M[r], A1[r]))
    for r in range(4):
        a("v_cvt_pk_bf16_f32 v%d, v%d, v%d" % (A1[r], M[r], M[r]))
    for r in range(4):
        a("v_lshlrev_b32 v%d, 16, v%d" % (A1[r], A1[r]))
    for r in range(4):
        a("v_sub_f32 v%d, v%d, v%d" % (A2[r], M[r], A1[r]))
    for r in range(4):
        a("v_cvt_pk_bf16_f32 v%d, v%d, v%d" % (A1[r], A2[r], A2[r]))
    for r in range(4):
        a("v_lshlrev_b32 v%d, 16, v%d" % (A1[r], A1[r]))
    for r in range(4):
        a("v_sub_f32 v%d, v%d, v%d" % (A3[r], A2[r], A1[r]))
    a("s_mov_b32 exec_lo, 0")
    a("s_mov_b32 exec_hi, 0xffff0000")
    for r in range(4):
        a("v_cvt_pk_bf16_f32 v%d, -v%d, -v%d" % (QF + 4 * r + 2, M[r], A2[r]))
        a("v_cvt_pk_bf16_f32 v%d, -v%d, 0" % (QF + 4 * r + 3, A3[r]))
    a("s_mov_b64 exec, -1")
    for r in range(4):
        store(QF + 4 * r, 4, vH, sT2, (r >> 1) * 2048 + (r & 1) * 256)
    for rr in range(2):
        g, u = [], []
        for r in (2 * rr, 2 * rr + 1):
            g += T(0, r) + T(2, r)
            u += T(1, r) + T(3, r)
        sig_mul(g, u)
        for q in range(2):
            d = T(6, 2 * rr + q)[0]
            pack(d, u[8 * q: 8 * q + 8])
            store(d, 4, vH, sT0 if rr == 0 else sT1, q * 256)
    fin()
    a.label("k1_exit")
    a("s_endpgm")
    return ("; @launch kernel=%s grid=(256,1,1) block=(512,1,1) lds=%d" % (name, K1_LDS), kernel_desc(name, nv))
```

```python
from gen import *

K2_LDS_PART = 0
K2_LDS_RING = 64 * 1024
K2_LDS_L = 128 * 1024
K2_LDS_MX = 132 * 1024
K2_LDS = 136 * 1024


class VM:
    def __init__(self, a):
        self.a = a
        self.q = []
    def issue(self, tag):
        self.q.append(tag)
    def wait(self, tag):
        idx = max(i for i, t in enumerate(self.q) if t == tag)
        n = len(self.q) - 1 - idx
        self.a("s_waitcnt vmcnt(%d)" % n)
        self.q = self.q[idx + 1:]
    def has(self, tag):
        return tag in self.q


def gen_k2(a, opt={}):
    name = "k2_kernel"
    kernel_head(a, name)
    sWS, sWD = 16, 20
    sWave, sJ, sMb, sXcd, sT = 28, 29, 30, 31, 32
    sT0, sT1, sT2, sT3 = 33, 34, 35, 36
    sQ0, sQ1, sKV, sKV0, sPass = 37, 38, 39, 40, 41
    sH0, sH1, sWoff, sRing = 42, 43, 44, 45
    sCnt = 46
    vLane, vSt = 1, 2
    vT = [3, 4, 5, 6, 7, 8, 9, 10]
    l = vLane

    a("s_cmp_ge_u32 s2, 256")
    a("s_cbranch_scc1 k2_exit")
    a.stamp_init(); a.stamp(0); a.stamp(6, True)
    a("s_load_dwordx2 s[12:13], s[0:1], 80")
    a("s_load_dwordx4 s[8:11], s[0:1], 48")
    a("s_load_dwordx2 s[4:5], s[0:1], 0")
    a("v_and_b32 v%d, 63, v0" % vLane)
    a("v_lshrrev_b32 v%d, 6, v0" % vT[0])
    a("s_and_b32 s%d, s2, 7" % sXcd)
    a("v_readfirstlane_b32 s%d, v%d" % (sWave, vT[0]))
    a("s_lshr_b32 s%d, s2, 3" % sT)
    a("v_lshlrev_b32 v%d, 4, v%d" % (vSt, l))
    a("s_waitcnt lgkmcnt(0)")
    make_srd(a, sWS, 12, 13, WS_SIZE)
    a("s_cmp_ge_u32 s%d, 4" % sWave)
    a("s_cbranch_scc1 k2_gemm")

    Q, O, S, PK, KB, VB = 32, 64, 128, 160, 176, 200
    nv = 224
    a("s_lshl_b32 s%d, s%d, 1" % (sJ, sXcd))
    a("s_and_b32 s%d, s%d, 1" % (sT0, sT))
    a("s_add_u32 s%d, s%d, s%d" % (sJ, sJ, sT0))
    a("s_lshr_b32 s%d, s%d, 1" % (sMb, sT))
    a("s_lshl_b32 s%d, s%d, 6" % (sT0, sJ))
    a("s_lshl_b32 s%d, s%d, 2" % (sT1, sMb))
    a("s_add_u32 s%d, s%d, s%d" % (sT1, sT1, sT0))
    a("s_lshl_b32 s%d, s%d, 11" % (sQ0, sT1))
    a("s_add_u32 s%d, s%d, 0x%x" % (sQ0, sQ0, WS_Q))
    a("s_add_u32 s%d, s%d, 4096" % (sQ1, sQ0))
    a("s_lshl_b32 s%d, s%d, 12" % (sT2, sT0))
    a("s_add_u32 s%d, s%d, 0x%x" % (sT2, sT2, WS_KV))
    a("s_lshl_b32 s%d, s%d, 16" % (sT3, sWave))
    a("s_add_u32 s%d, s%d, s%d" % (sKV0, sT2, sT3))
    a("s_mov_b32 s%d, 0" % sPass)
    if opt.get("prio", 0):
        a("s_setprio %d" % opt["prio"])

    def ld(dst, soff, imm):
        a("buffer_load_dwordx4 %s, v%d, %s, s%d offen offset:%d" % (vr(dst, 4), vSt, sr(sWS, 4), soff, imm))

    ld(PK, sT2, 0)
    ld(PK + 4, sT2, 1024)
    for qt in range(4):
        for f in range(2):
            ld(Q + 8 * qt + 4 * f, sQ0 if qt < 2 else sQ1, (qt % 2) * 2048 + f * 1024)
    a("s_waitcnt vmcnt(0)")

    def mfma(d, x, y, c):
        a("v_mfma_f32_32x32x16_bf16 %s, %s, %s, %s" % (vr(d, 16), vr(x, 4), vr(y, 4), c))

    def set_shift(qt, m):
        t0, t1, t2 = vT[0], vT[1], vT[2]
        a("v_cvt_pk_bf16_f32 v%d, v%d, v%d" % (t0, m, m))
        a("v_lshlrev_b32 v%d, 16, v%d" % (t0, t0))
        a("v_sub_f32 v%d, v%d, v%d" % (t1, m, t0))
        a("v_cvt_pk_bf16_f32 v%d, v%d, v%d" % (t0, t1, t1))
        a("v_lshlrev_b32 v%d, 16, v%d" % (t0, t0))
        a("v_sub_f32 v%d, v%d, v%d" % (t2, t1, t0))
        a("s_mov_b32 exec_hi, 0")
        a("v_cvt_pk_bf16_f32 v%d, -v%d, -v%d" % (Q + 8 * qt + 6, m, t1))
        a("v_cvt_pk_bf16_f32 v%d, -v%d, 0" % (Q + 8 * qt + 7, t2))
        a("s_mov_b32 exec_hi, -1")

    def max16(dst, src, first):
        r = list(range(src, src + 16))
        if first:
            a("v_max3_f32 v%d, v%d, v%d, v%d" % (dst, r[0], r[1], r[2]))
            rest = r[3:]
        else:
            rest = r
        i = 0
        while i + 1 < len(rest):
            a("v_max3_f32 v%d, v%d, v%d, v%d" % (dst, dst, rest[i], rest[i + 1]))
            i += 2
        if i < len(rest):
            a("v_max_f32 v%d, v%d, v%d" % (dst, dst, rest[i]))

    def cross_half_max(m):
        t0, t1 = vT[3], vT[4]
        a("v_mov_b32 v%d, v%d" % (t0, m))
        a("v_mov_b32 v%d, v%d" % (t1, m))
        a("s_nop 1")
        a("v_permlane32_swap_b32 v%d, v%d" % (t0, t1))
        a("s_nop 1")
        a("v_max_f32 v%d, v%d, v%d" % (m, t0, t1))

    MX = [12, 13, 14, 15]
    for qt in range(4):
        mfma(O + 16 * qt, PK, Q + 8 * qt, "0")
        mfma(O + 16 * qt, PK + 4, Q + 8 * qt + 4, vr(O + 16 * qt, 16))
    a("s_nop 7")
    for qt in range(4):
        max16(MX[qt], O + 16 * qt, True)
        cross_half_max(MX[qt])
        set_shift(qt, MX[qt])

    a.label("k2_attn_main")
    a.stamp(1)
    vm = VM(a)
    a("s_mov_b32 s%d, s%d" % (sKV, sKV0))

    def ldgroup(n):
        b = n % 3
        ld(KB + 8 * b, sKV, 0); vm.issue(("K", n))
        ld(KB + 8 * b + 4, sKV, 1024); vm.issue(("K", n))
        ld(VB + 8 * b, sKV, 2048); vm.issue(("V", n))
        ld(VB + 8 * b + 4, sKV, 3072); vm.issue(("V", n))
        a("s_add_u32 s%d, s%d, 4096" % (sKV, sKV))

    for n in range(3):
        ldgroup(n)

    def MS(u):
        kt, qt = u // 4, u % 4
        d = S + 16 * (u % 2)
        kb = KB + 8 * (kt % 3)
        return ["v_mfma_f32_32x32x16_bf16 %s, %s, %s, 0" % (vr(d, 16), vr(kb, 4), vr(Q + 8 * qt, 4)),
                "v_mfma_f32_32x32x16_bf16 %s, %s, %s, %s" % (vr(d, 16), vr(kb + 4, 4), vr(Q + 8 * qt + 4, 4), vr(d, 16))]

    def MP(u):
        kt, qt = u // 4, u % 4
        d = O + 16 * qt
        vb = VB + 8 * (kt % 3)
        p = PK + 8 * (u % 2)
        return ["v_mfma_f32_32x32x16_bf16 %s, %s, %s, %s" % (vr(d, 16), vr(vb, 4), vr(p, 4), "0" if kt == 0 else vr(d, 16)),
                "v_mfma_f32_32x32x16_bf16 %s, %s, %s, %s" % (vr(d, 16), vr(vb + 4, 4), vr(p + 4, 4), vr(d, 16))]

    def EX(u):
        d = S + 16 * (u % 2)
        return ["v_exp_f32 v%d, v%d" % (d + i, d + i) for i in range(16)]

    def CV(u):
        d = S + 16 * (u % 2)
        p = PK + 8 * (u % 2)
        return ["v_cvt_pk_bf16_f32 v%d, v%d, v%d" % (p + i, d + 2 * i, d + 2 * i + 1) for i in range(8)]

    NU = 64
    vm.wait(("K", 0))
    for x in MS(0):
        a(x)
    a("s_nop 7")
    a("s_nop 3")
    sched = opt.get("sched", 1)
    a.stamp(2)
    for u in range(NU + 1):
        ms = MS(u + 1) if u + 1 < NU else []
        mp = MP(u - 1) if u >= 1 else []
        ex = EX(u) if u < NU else []
        cv = CV(u) if u < NU else []
        if ms and (u + 1) % 4 == 0:
            vm.wait(("K", (u + 1) // 4))
        if mp and (u - 1) % 4 == 0:
            vm.wait(("V", (u - 1) // 4))
        if u % 4 == 1 and u >= 5 and (u - 5) // 4 + 3 < 16:
            pend = (u - 5) // 4 + 3
        else:
            pend = None
        if u == NU:
            a("s_nop 1")
            for x in mp:
                a(x)
            break
        mm = ms + mp
        if sched == 0:
            seq = []
            seq += mm[0:1] + ex[0:4] + mm[1:2] + ex[4:8] + cv[0:4] + mm[2:3] + ex[8:12] + mm[3:4] + ex[12:16] + cv[4:8]
        else:
            seq = mm[0:1] + ex[0:3] + mm[1:2] + ex[3:6] + mm[2:3] + ex[6:9] + mm[3:4] + ex[9:16] + cv
        for x in seq:
            a(x)
        if pend is not None:
            ldgroup(pend)
    a.stamp(3)
    vA, vB2 = vT[0], vT[1]
    a("s_lshl_b32 s%d, s%d, 12" % (sT0, sWave))
    a("v_add_u32 v%d, s%d, v%d" % (vA, sT0, vSt))
    a("s_lshl_b32 s%d, s%d, 10" % (sT0, sWave))
    a("v_lshl_add_u32 v%d, v%d, 2, s%d" % (vB2, l, sT0))
    a("v_add_u32 v%d, 0x%x, v%d" % (vB2, K2_LDS_L, vB2))
    a("s_nop 7")
    for qt in range(4):
        a("ds_write_b32 v%d, v%d offset:%d" % (vB2, O + 16 * qt + 12, qt * 256))
    for qt in range(4):
        a("s_cmp_eq_u32 s%d, %d" % (sWave, qt))
        a("s_cbranch_scc1 k2_skipw%d" % qt)
        for quad in range(4):
            a("ds_write_b128 v%d, %s offset:%d" % (vA, vr(O + 16 * qt + 4 * quad, 4), qt * 16384 + quad * 1024))
        a.label("k2_skipw%d" % qt)
    a("s_waitcnt lgkmcnt(0)")
    a("s_barrier")
    a.stamp(4)
    a("s_cmp_lg_u32 s%d, 0" % sPass)
    a("s_cbranch_scc1 k2_reduce")
    t0, t1 = vT[2], vT[3]
    a("v_and_b32 v%d, 31, v%d" % (t0, l))
    a("v_lshrrev_b32 v%d, 5, v%d" % (t1, l))
    a("v_lshlrev_b32 v%d, 2, v%d" % (t0, t0))
    a("v_lshl_add_u32 v%d, v%d, 8, v%d" % (t0, t1, t0))
    a("v_add_u32 v%d, 0x%x, v%d" % (t0, K2_LDS_L, t0))
    LB = S
    for w in range(4):
        for i in range(2):
            a("ds_read_b32 v%d, v%d offset:%d" % (LB + 2 * w + i, t0, w * 1024 + i * 512))
    a("s_waitcnt lgkmcnt(0)")
    for i in range(2):
        a("v_add_f32 v%d, v%d, v%d" % (LB + i, LB + i, LB + 2 + i))
        a("v_add_f32 v%d, v%d, v%d" % (LB + 4 + i, LB + 4 + i, LB + 6 + i))
        a("v_add_f32 v%d, v%d, v%d" % (LB + i, LB + i, LB + 4 + i))
    a("v_add_f32 v%d, v%d, v%d" % (LB, LB, LB + 1))
    a("v_mov_b32 v%d, %s" % (t1, f32hex(2.0 ** 30)))
    a("v_cmp_nle_f32 vcc, v%d, v%d" % (LB, t1))
    a("s_nop 4")
    a("s_cbranch_vccnz k2_fallback")
    a.label("k2_reduce")
    a("s_lshl_b32 s%d, s%d, 14" % (sT0, sWave))
    a("v_add_u32 v%d, s%d, v%d" % (vA, sT0, vSt))
    R = S
    for w in range(4):
        a("s_cmp_lg_u32 s%d, %d" % (sWave, w))
        a("s_cbranch_scc1 k2_red%d" % w)
        srcs = [x for x in range(4) if x != w]
        for i, sw in enumerate(srcs):
            for quad in range(4):
                a("ds_read_b128 %s, v%d offset:%d" % (vr(128 + 16 * i + 4 * quad, 4), vA, sw * 4096 + quad * 1024))
        a("s_waitcnt lgkmcnt(8)")
        for i in range(16):
            a("v_add_f32 v%d, v%d, v%d" % (128 + i, 128 + i, O + 16 * w + i))
        a("s_branch k2_red_done")
        a.label("k2_red%d" % w)
    a.label("k2_red_done")
    a("s_waitcnt lgkmcnt(4)")
    for i in range(16):
        a("v_add_f32 v%d, v%d, v%d" % (128 + i, 128 + i, 144 + i))
    a("s_waitcnt lgkmcnt(0)")
    for i in range(16):
        a("v_add_f32 v%d, v%d, v%d" % (128 + i, 128 + i, 160 + i))
    t0, t1 = vT[2], vT[3]
    a("v_mov_b32 v%d, v%d" % (t0, 140))
    a("v_mov_b32 v%d, v%d" % (t1, 140))
    a("s_nop 1")
    a("v_permlane32_swap_b32 v%d, v%d" % (t0, t1))
    a("s_nop 1")
    a("v_rcp_f32 v%d, v%d" % (t0, t0))
    a("s_nop 0")
    for i in range(16):
        a("v_mul_f32 v%d, v%d, v%d" % (128 + i, t0, 128 + i))
    a("s_mov_b32 exec_hi, 0")
    for i in range(12, 16):
        a("v_mov_b32 v%d, 0" % (128 + i))
    a("s_mov_b32 exec_hi, -1")
    for i in range(8):
        a("v_cvt_pk_bf16_f32 v%d, v%d, v%d" % (144 + i, 128 + 2 * i, 128 + 2 * i + 1))
    a("s_lshl_b32 s%d, s%d, 2" % (sT0, sMb))
    a("s_add_u32 s%d, s%d, s%d" % (sT0, sT0, sWave))
    a("s_lshl_b32 s%d, s%d, 4" % (sT0, sT0))
    a("s_add_u32 s%d, s%d, s%d" % (sT0, sT0, sJ))
    a("s_lshl_b32 s%d, s%d, 11" % (sT0, sT0))
    a("s_add_u32 s%d, s%d, 0x%x" % (sT0, sT0, WS_O))
    a("buffer_store_dwordx4 %s, v%d, %s, s%d offen" % (vr(144, 4), vSt, sr(sWS, 4), sT0))
    a("buffer_store_dwordx4 %s, v%d, %s, s%d offen offset:1024" % (vr(148, 4), vSt, sr(sWS, 4), sT0))
    if a.stamps:
        a("s_waitcnt vmcnt(0)")
    a.stamp(5); a.stamp(7, True)
    a.stamp_flush()
    a("s_endpgm")

    a.label("k2_fallback")
    a("s_mov_b32 s%d, 1" % sPass)
    a("s_mov_b32 exec_hi, 0")
    for qt in range(4):
        a("v_mov_b32 v%d, 0" % (Q + 8 * qt + 6))
        a("v_mov_b32 v%d, 0" % (Q + 8 * qt + 7))
    a("s_mov_b32 exec_hi, -1")
    for qt in range(4):
        a("v_mov_b32 v%d, 0xff800000" % MX[qt])
    a("s_mov_b32 s%d, s%d" % (sKV, sKV0))
    a("s_mov_b32 s%d, 0" % sCnt)
    a.label("k2_fb_loop")
    ld(KB, sKV, 0)
    ld(KB + 4, sKV, 1024)
    a("s_add_u32 s%d, s%d, 4096" % (sKV, sKV))
    a("s_waitcnt vmcnt(0)")
    for qt in range(4):
        mfma(O + 16 * qt, KB, Q + 8 * qt, "0")
        mfma(O + 16 * qt, KB + 4, Q + 8 * qt + 4, vr(O + 16 * qt, 16))
    a("s_nop 7")
    a("s_nop 7")
    for qt in range(4):
        max16(MX[qt], O + 16 * qt, False)
    a("s_add_u32 s%d, s%d, 1" % (sCnt, sCnt))
    a("s_cmp_lt_u32 s%d, 16" % sCnt)
    a("s_cbranch_scc1 k2_fb_loop")
    for qt in range(4):
        cross_half_max(MX[qt])
    a("s_lshl_b32 s%d, s%d, 10" % (sT0, sWave))
    a("v_lshl_add_u32 v%d, v%d, 2, s%d" % (vB2, l, sT0))
    a("v_add_u32 v%d, 0x%x, v%d" % (vB2, K2_LDS_MX, vB2))
    for qt in range(4):
        a("ds_write_b32 v%d, v%d offset:%d" % (vB2, MX[qt], qt * 256))
    a("s_waitcnt lgkmcnt(0)")
    a("s_barrier")
    a("v_lshlrev_b32 v%d, 2, v%d" % (vB2, l))
    a("v_add_u32 v%d, 0x%x, v%d" % (vB2, K2_LDS_MX, vB2))
    for w in range(4):
        for qt in range(4):
            a("ds_read_b32 v%d, v%d offset:%d" % (S + 4 * w + qt, vB2, w * 1024 + qt * 256))
    a("s_waitcnt lgkmcnt(0)")
    for qt in range(4):
        a("v_max3_f32 v%d, v%d, v%d, v%d" % (MX[qt], S + qt, S + 4 + qt, S + 8 + qt))
        a("v_max_f32 v%d, v%d, v%d" % (MX[qt], MX[qt], S + 12 + qt))
    for qt in range(4):
        set_shift(qt, MX[qt])
    a("s_branch k2_attn_main")

    a.label("k2_gemm")
    a("s_sub_u32 s%d, s%d, 4" % (sWave, sWave))
    a("s_cmp_ge_u32 s%d, 28" % sT)
    a("s_cbranch_scc1 k2_gate")
    make_srd(a, sWD, 8, 9, 1792 * 896)
    PD = 8
    ACC, HB, WB = 32, 96, 160
    vD0, vD1, vRA = 11, 12, 13
    a("s_mul_i32 s%d, s%d, 37" % (sT0, sT))
    a("s_lshr_b32 s%d, s%d, 8" % (sT0, sT0))
    a("s_mul_i32 s%d, s%d, 7" % (sT1, sT0))
    a("s_sub_u32 s%d, s%d, s%d" % (sT1, sT, sT1))
    a("s_lshl_b32 s%d, s%d, 2" % (sT2, sXcd))
    a("s_add_u32 s%d, s%d, s%d" % (sT0, sT0, sT2))
    a("s_mul_i32 s%d, s%d, 224" % (sT2, sT0))
    a("s_mul_i32 s%d, s%d, 28" % (sT3, sWave))
    a("s_add_u32 s%d, s%d, s%d" % (sT2, sT2, sT3))
    a("s_lshl_b32 s%d, s%d, 10" % (sH0, sT2))
    a("s_add_u32 s%d, s%d, 0x%x" % (sH0, sH0, WS_H))
    a("s_add_u32 s%d, s%d, %d" % (sH1, sH0, 112 * 1024))
    a("s_mul_i32 s%d, s%d, %d" % (sWoff, sWave, 28 * 16 * 896))
    a("s_lshl_b32 s%d, s%d, 7" % (sT2, sT1))
    a("s_add_u32 s%d, s%d, s%d" % (sWoff, sWoff, sT2))
    a("s_lshl_b32 s%d, s%d, 14" % (sRing, sWave))
    a("s_add_u32 s%d, s%d, 0x%x" % (sRing, sRing, K2_LDS_RING))
    a("s_mov_b32 s%d, s%d" % (sMb, sT0))
    a("s_mov_b32 s%d, s%d" % (sJ, sT1))
    t0, t1, t2, t3, t4 = vT[0:5]
    a("v_lshrrev_b32 v%d, 2, v%d" % (t0, l))
    a("v_and_b32 v%d, 3, v%d" % (t1, l))
    a("v_mul_u32_u24 v%d, 896, v%d" % (t0, t0))
    a("v_lshl_add_u32 v%d, v%d, 4, v%d" % (vD0, t1, t0))
    a("v_add_u32 v%d, 64, v%d" % (vD1, vD0))
    a("v_lshrrev_b32 v%d, 5, v%d" % (t0, l))
    a("v_bfe_u32 v%d, v%d, 2, 2" % (t2, l))
    a("v_lshl_add_u32 v%d, v%d, 2, v%d" % (t2, t0, t2))
    a("v_bfe_u32 v%d, v%d, 4, 1" % (t3, l))
    a("v_lshlrev_b32 v%d, 3, v%d" % (t1, t1))
    a("v_lshl_add_u32 v%d, v%d, 6, v%d" % (t2, t2, t1))
    a("v_lshl_add_u32 v%d, v%d, 5, v%d" % (t2, t3, t2))
    a("v_add_u32 v%d, s%d, v%d" % (vRA, sRing, t2))
    vg = VM(a)

    def gload(i):
        b = i % PD
        for c in range(2):
            a("s_add_u32 m0, s%d, %d" % (sRing, b * 2048 + c * 1024))
            a("s_nop 0")
            a("buffer_load_dwordx4 v%d, %s, s%d offen lds" % (vD0 if c == 0 else vD1, sr(sWD, 4), sWoff))
            vg.issue(("W", i))
        a("s_add_u32 s%d, s%d, %d" % (sWoff, sWoff, 16 * 896))
        for r in range(2):
            a("buffer_load_dwordx4 %s, v%d, %s, s%d offen offset:%d" % (vr(HB + 8 * b + 4 * r, 4), vSt, sr(sWS, 4), sH0 if r == 0 else sH1, (i % 4) * 1024))
            vg.issue(("H", i))
        if i % 4 == 3:
            a("s_add_u32 s%d, s%d, 4096" % (sH0, sH0))
            a("s_add_u32 s%d, s%d, 4096" % (sH1, sH1))

    def greads(i):
        b = i % PD
        for c in range(2):
            for half in range(2):
                a("ds_read_b64_tr_b16 %s, v%d offset:%d" % (vr(WB + 8 * (i % 2) + 4 * c + 2 * half, 2), vRA, b * 2048 + c * 1024 + half * 512))

    for i in range(PD):
        gload(i)
    a.stamp(1)
    vg.wait(("W", 0))
    a.stamp(2)
    greads(0)
    for i in range(28):
        if i + 1 < 28:
            vg.wait(("W", i + 1))
            greads(i + 1)
            a("s_waitcnt lgkmcnt(4)")
        else:
            vg.wait(("H", i))
            a("s_waitcnt lgkmcnt(0)")
        for c in range(2):
            for r in range(2):
                d = ACC + 16 * (2 * c + r)
                mfma(d, WB + 8 * (i % 2) + 4 * c, HB + 8 * (i % PD) + 4 * r, "0" if i == 0 else vr(d, 16))
        if i + PD < 28:
            gload(i + PD)
    a.stamp(3)
    a("v_add_u32 v%d, s%d, v%d" % (vA, sRing, vSt))
    a("s_nop 7")
    a("s_nop 3")
    for tl in range(4):
        a("s_cmp_eq_u32 s%d, %d" % (sWave, tl))
        a("s_cbranch_scc1 k2_gskip%d" % tl)
        for quad in range(4):
            a("ds_write_b128 v%d, %s offset:%d" % (vA, vr(ACC + 16 * tl + 4 * quad, 4), tl * 4096 + quad * 1024))
        a.label("k2_gskip%d" % tl)
    a("s_waitcnt lgkmcnt(0)")
    a("s_barrier")
    a.stamp(4)
    a("s_lshl_b32 s%d, s%d, 12" % (sT0, sWave))
    a("s_add_u32 s%d, s%d, 0x%x" % (sT0, sT0, K2_LDS_RING))
    a("v_add_u32 v%d, s%d, v%d" % (vA, sT0, vSt))
    for w in range(4):
        a("s_cmp_lg_u32 s%d, %d" % (sWave, w))
        a("s_cbranch_scc1 k2_gred%d" % w)
        srcs = [x for x in range(4) if x != w]
        for i, sw in enumerate(srcs):
            for quad in range(4):
                a("ds_read_b128 %s, v%d offset:%d" % (vr(128 + 16 * i + 4 * quad, 4), vA, sw * 16384 + quad * 1024))
        a("s_waitcnt lgkmcnt(8)")
        for i in range(16):
            a("v_add_f32 v%d, v%d, v%d" % (128 + i, 128 + i, ACC + 16 * w + i))
        a("s_branch k2_gred_done")
        a.label("k2_gred%d" % w)
    a.label("k2_gred_done")
    a("s_waitcnt lgkmcnt(4)")
    for i in range(16):
        a("v_add_f32 v%d, v%d, v%d" % (128 + i, 128 + i, 144 + i))
    a("s_waitcnt lgkmcnt(0)")
    for i in range(16):
        a("v_add_f32 v%d, v%d, v%d" % (128 + i, 128 + i, 160 + i))
    for i in range(8):
        a("v_cvt_pk_bf16_f32 v%d, v%d, v%d" % (144 + i, 128 + 2 * i, 128 + 2 * i + 1))
    a("s_and_b32 s%d, s%d, 1" % (sT0, sWave))
    a("s_lshl_b32 s%d, s%d, 1" % (sT1, sMb))
    a("s_add_u32 s%d, s%d, s%d" % (sT0, sT0, sT1))
    a("s_mul_i32 s%d, s%d, 14" % (sT0, sT0))
    a("s_lshr_b32 s%d, s%d, 1" % (sT1, sWave))
    a("s_add_u32 s%d, s%d, s%d" % (sT0, sT0, sT1))
    a("s_lshl_b32 s%d, s%d, 1" % (sT1, sJ))
    a("s_add_u32 s%d, s%d, s%d" % (sT0, sT0, sT1))
    a("s_lshl_b32 s%d, s%d, 11" % (sT0, sT0))
    a("s_add_u32 s%d, s%d, 0x%x" % (sT0, sT0, WS_B))
    a("buffer_store_dwordx4 %s, v%d, %s, s%d offen" % (vr(144, 4), vSt, sr(sWS, 4), sT0))
    a("buffer_store_dwordx4 %s, v%d, %s, s%d offen offset:1024" % (vr(148, 4), vSt, sr(sWS, 4), sT0))
    if a.stamps:
        a("s_waitcnt vmcnt(0)")
    a.stamp(5); a.stamp(7, True)
    a.stamp_flush()
    a("s_endpgm")

    a.label("k2_gate")
    sX, sG = 20, 24
    make_srd(a, sX, 4, 5, 2048 * 896)
    make_srd(a, sG, 10, 11, 896)
    a("s_lshl_b32 s%d, s%d, 2" % (sT0, sXcd))
    a("s_add_u32 s%d, s%d, s%d" % (sT0, sT0, sT))
    a("s_sub_u32 s%d, s%d, 28" % (sT0, sT0))
    a("s_lshl_b32 s%d, s%d, 2" % (sT0, sT0))
    a("s_add_u32 s%d, s%d, s%d" % (sT0, sT0, sWave))
    a("s_lshl_b32 s%d, s%d, 4" % (sT0, sT0))
    t0, t1, t2, t3, t4, t5, t6 = vT[0:7]
    a("v_lshrrev_b32 v%d, 2, v%d" % (t0, l))
    a("v_add_u32 v%d, s%d, v%d" % (t0, sT0, t0))
    a("v_and_b32 v%d, 3, v%d" % (t1, l))
    a("v_lshlrev_b32 v%d, 4, v%d" % (t1, t1))
    a("v_mul_u32_u24 v%d, 896, v%d" % (t2, t0))
    a("v_add_u32 v%d, v%d, v%d" % (t2, t2, t1))
    for i in range(14):
        a("buffer_load_dwordx4 %s, v%d, %s, 0 offen offset:%d" % (vr(32 + 4 * i, 4), t2, sr(sX, 4), 64 * i))
        a("buffer_load_dwordx4 %s, v%d, %s, 0 offen offset:%d" % (vr(96 + 4 * i, 4), t1, sr(sG, 4), 64 * i))
    a("v_mov_b32 v%d, 0" % t3)
    a("v_mov_b32 v%d, 0" % t4)
    a("s_waitcnt vmcnt(0)")
    for i in range(56):
        xr, gr = 32 + i, 96 + i
        a("v_lshlrev_b32 v%d, 16, v%d" % (t5, xr))
        a("v_lshlrev_b32 v%d, 16, v%d" % (t6, gr))
        a("v_fmac_f32 v%d, v%d, v%d" % (t3, t5, t6))
        a("v_and_b32 v%d, 0xffff0000, v%d" % (t5, xr))
        a("v_and_b32 v%d, 0xffff0000, v%d" % (t6, gr))
        a("v_fmac_f32 v%d, v%d, v%d" % (t4, t5, t6))
    a("v_add_f32 v%d, v%d, v%d" % (t3, t3, t4))
    a("s_nop 1")
    a("v_add_f32_dpp v%d, v%d, v%d quad_perm:[1,0,3,2] row_mask:0xf bank_mask:0xf" % (t4, t3, t3))
    a("s_nop 1")
    a("v_add_f32_dpp v%d, v%d, v%d quad_perm:[2,3,0,1] row_mask:0xf bank_mask:0xf" % (t3, t4, t4))
    a("v_mul_f32 v%d, %s, v%d" % (t3, f32hex(-LOG2E), t3))
    a("v_exp_f32 v%d, v%d" % (t3, t3))
    a("s_nop 0")
    a("v_add_f32 v%d, 1.0, v%d" % (t3, t3))
    a("v_rcp_f32 v%d, v%d" % (t3, t3))
    a("v_lshlrev_b32 v%d, 2, v%d" % (t0, t0))
    a("s_mov_b32 s%d, 0x%x" % (sT0, WS_G))
    a("buffer_store_dword v%d, v%d, %s, s%d offen" % (t3, t0, sr(sWS, 4), sT0))
    a("s_endpgm")
    a.label("k2_exit")
    a("s_endpgm")
    return ("; @launch kernel=%s grid=(256,1,1) block=(512,1,1) lds=%d" % (name, K2_LDS), kernel_desc(name, nv))
```

```python
from gen import *
from gen_k1 import Cnt

L_ATT = 0
L_GEMM = 48 * 1024
L_MX = 144 * 1024
L_FLG = 148 * 1024
K2_LDS = 148 * 1024 + 256
WS_B1 = WS_B + (2 << 20)


def gen_k2(a, opt={}):
    name = "k2_kernel"
    kernel_head(a, name)
    sWS, sWD = 16, 20
    sWave, sJ, sMb, sXcd, sT = 28, 29, 30, 31, 32
    sT0, sT1, sT2, sT3 = 33, 34, 35, 36
    sQ = [37, 38, 39, 40]
    sKVb, sKo, sKV, sPass, sKo0 = 41, 42, 43, 44, 45
    sCnt = 46
    sHo, sWo, sRing, sBo = 47, 48, 49, 50
    vLane, vSt = 1, 2
    vT = [3, 4, 5, 6, 7, 8, 9, 10, 11]
    l = vLane

    a("s_cmp_ge_u32 s2, 256")
    a("s_cbranch_scc1 k2_exit")
    a.stamp_init(); a.stamp(0); a.stamp(6, True)
    a("s_load_dwordx2 s[12:13], s[0:1], 80")
    a("s_load_dwordx4 s[8:11], s[0:1], 48")
    a("s_load_dwordx2 s[4:5], s[0:1], 0")
    a("v_and_b32 v%d, 63, v0" % vLane)
    a("v_lshrrev_b32 v%d, 6, v0" % vT[0])
    a("s_and_b32 s%d, s2, 7" % sXcd)
    a("v_readfirstlane_b32 s%d, v%d" % (sWave, vT[0]))
    a("s_lshr_b32 s%d, s2, 3" % sT)
    a("v_lshlrev_b32 v%d, 4, v%d" % (vSt, l))
    a("s_cmp_ge_u32 s%d, 4" % sWave)
    a("s_cbranch_scc1 k2_gemm")

    def mfma(d, x, y, c):
        a("v_mfma_f32_32x32x16_bf16 %s, %s, %s, %s" % (vr(d, 16), vr(x, 4), vr(y, 4), c))

    _pc = [0]
    def poll(vF, off, t):
        _pc[0] += 1
        lab = "k2_poll%d" % _pc[0]
        a.label(lab)
        a("ds_read_b128 %s, v%d offset:%d" % (vr(t, 4), vF, off))
        a("s_waitcnt lgkmcnt(0)")
        a("v_min_u32 v%d, v%d, v%d" % (t + 4, t, t + 1))
        a("v_min3_u32 v%d, v%d, v%d, v%d" % (t + 4, t + 4, t + 2, t + 3))
        a("s_nop 0")
        a("v_readfirstlane_b32 s%d, v%d" % (sT3, t + 4))
        a("s_cmp_eq_u32 s%d, 0" % sT3)
        a("s_cbranch_scc1 %s" % lab)

    KVD = opt.get("kvd", 3)
    Q, O, S, PK, KB = 32, 64, 128, 160, 176
    VB = KB + 8 * KVD
    MX = [12, 13, 14, 15]
    vOA = [16, 17, 18, 19]
    vRd = [20, 21, 22]
    vWr, vF, vFw = 23, 24, 25
    a("s_lshl_b32 s%d, s%d, 1" % (sJ, sXcd))
    a("s_and_b32 s%d, s%d, 1" % (sT0, sT))
    a("s_add_u32 s%d, s%d, s%d" % (sJ, sJ, sT0))
    a("s_lshr_b32 s%d, s%d, 1" % (sMb, sT))
    a("s_lshl_b32 s%d, s%d, 6" % (sT0, sJ))
    a("s_lshl_b32 s%d, s%d, 2" % (sT1, sMb))
    a("s_add_u32 s%d, s%d, s%d" % (sT1, sT1, sT0))
    for qt in range(4):
        a("s_add_u32 s%d, s%d, %d" % (sT2, sWave, qt))
        a("s_and_b32 s%d, s%d, 3" % (sT2, sT2))
        a("s_add_u32 s%d, s%d, s%d" % (sT2, sT2, sT1))
        a("s_lshl_b32 s%d, s%d, 11" % (sQ[qt], sT2))
        if WS_Q:
            a("s_add_u32 s%d, s%d, 0x%x" % (sQ[qt], sQ[qt], WS_Q))
    a("s_lshl_b32 s%d, s%d, 12" % (sT2, sT0))
    a("s_add_u32 s%d, s%d, 0x%x" % (sT2, sT2, WS_KV))
    a("s_lshl_b32 s%d, s%d, 16" % (sT3, sWave))
    a("s_add_u32 s%d, s%d, s%d" % (sKVb, sT2, sT3))
    if not opt.get("arot", 1):
        a("s_mov_b32 s%d, 0" % sKo0)
    else:
        a("s_lshl_b32 s%d, s%d, 12" % (sKo0, sMb))
    a("s_mov_b32 s%d, s%d" % (sKo, sKo0))
    a("s_add_u32 s%d, s%d, s%d" % (sKV, sKVb, sKo))
    a("s_mov_b32 s%d, 0" % sPass)
    a("s_waitcnt lgkmcnt(0)")
    make_srd(a, sWS, 12, 13, WS_SIZE)
    if opt.get("prio", 0):
        a("s_setprio %d" % opt["prio"])

    def ld(dst, soff, imm):
        a("buffer_load_dwordx4 %s, v%d, %s, s%d offen offset:%d" % (vr(dst, 4), vSt, sr(sWS, 4), soff, imm))

    vm = Cnt(a, "vmcnt")
    def kvnext():
        a("s_add_u32 s%d, s%d, 4096" % (sKo, sKo))
        a("s_and_b32 s%d, s%d, 0xffff" % (sKo, sKo))
        a("s_add_u32 s%d, s%d, s%d" % (sKV, sKVb, sKo))
    def ldK(n):
        b = n % KVD
        ld(KB + 8 * b, sKV, 0); vm.issue(("K", n))
        ld(KB + 8 * b + 4, sKV, 1024); vm.issue(("K", n))
    def ldV(n):
        b = n % KVD
        ld(VB + 8 * b, sKV, 2048); vm.issue(("V", n))
        ld(VB + 8 * b + 4, sKV, 3072); vm.issue(("V", n))
        kvnext()
    def ldQ(qt):
        for f in range(2):
            ld(Q + 8 * qt + 4 * f, sQ[qt], f * 1024); vm.issue(("Q", qt))
    def ldgroup(n):
        ldK(n); ldV(n)

    ldK(0); ldQ(0); ldQ(1); ldV(0); ldQ(2); ldQ(3)
    KV0 = opt.get("kv0", KVD)
    for n in range(1, KV0):
        ldgroup(n)
    t0, t1, t2, t3 = vT[0:4]
    a("v_mov_b32 v%d, 0x%x" % (vF, L_FLG))
    a("v_lshl_add_u32 v%d, v%d, 2, v%d" % (t0, l, vF))
    a("v_mov_b32 v%d, 0" % t1)
    a("ds_write_b32 v%d, v%d" % (t0, t1))
    a("s_lshl_b32 s%d, s%d, 2" % (sT0, sWave))
    a("v_add_u32 v%d, s%d, v%d" % (vFw, sT0, vF))
    a("s_mul_i32 s%d, s%d, 12288" % (sT0, sWave))
    a("v_add_u32 v%d, s%d, v%d" % (vWr, sT0, vSt))
    for k in range(1, 4):
        a("s_sub_u32 s%d, s%d, %d" % (sT0, sWave, k))
        a("s_and_b32 s%d, s%d, 3" % (sT0, sT0))
        a("s_mul_i32 s%d, s%d, 12288" % (sT0, sT0))
        a("s_add_u32 s%d, s%d, %d" % (sT0, sT0, (k - 1) * 4096))
        a("v_add_u32 v%d, s%d, v%d" % (vRd[k - 1], sT0, vSt))
    a("s_waitcnt lgkmcnt(0)")
    a("s_barrier")
    a("v_lshrrev_b32 v%d, 5, v%d" % (t0, l))
    a("s_mul_i32 s%d, s%d, 7" % (sT0, sJ))
    a("v_add_u32 v%d, s%d, v%d" % (t0, sT0, t0))
    a("v_and_b32 v%d, 31, v%d" % (t1, l))
    a("v_lshlrev_b32 v%d, 4, v%d" % (t1, t1))
    a("v_and_b32 v%d, 1, v%d" % (t2, t0))
    a("v_lshl_add_u32 v%d, v%d, 9, v%d" % (t1, t2, t1))
    a("s_lshl_b32 s%d, s%d, 2" % (sT0, sMb))
    a("s_add_u32 s%d, s%d, s%d" % (sT0, sT0, sWave))
    a("s_mul_i32 s%d, s%d, %d" % (sT0, sT0, 28 * 1024))
    a("s_add_u32 s%d, s%d, 0x%x" % (sT0, sT0, WS_O))
    a("v_add_u32 v%d, s%d, v%d" % (t1, sT0, t1))
    for ii in range(4):
        a("v_add_u32 v%d, %d, v%d" % (t2, 2 * ii, t0))
        a("v_lshrrev_b32 v%d, 2, v%d" % (t3, t2))
        a("v_lshl_add_u32 v%d, v%d, 10, v%d" % (vOA[ii], t3, t1))
        a("v_bfe_u32 v%d, v%d, 1, 1" % (t3, t2))
        a("v_lshl_add_u32 v%d, v%d, 3, v%d" % (vOA[ii], t3, vOA[ii]))
    a("s_branch k2_attn_go")
    first_q = list(vm.q)

    a.label("k2_attn_main")
    a("s_mov_b32 s%d, s%d" % (sKo, sKo0))
    a("s_add_u32 s%d, s%d, s%d" % (sKV, sKVb, sKo))
    vm.q = []
    for n in range(KV0):
        ldgroup(n)
    a("s_waitcnt vmcnt(0)")
    vm.q = first_q
    a.label("k2_attn_go")
    a.stamp(1)

    def MS(u):
        kt, qt = u // 4, u % 4
        d = S + 16 * (u % 2)
        kb = KB + 8 * (kt % KVD)
        return ["v_mfma_f32_32x32x16_bf16 %s, %s, %s, 0" % (vr(d, 16), vr(kb, 4), vr(Q + 8 * qt, 4)),
                "v_mfma_f32_32x32x16_bf16 %s, %s, %s, %s" % (vr(d, 16), vr(kb + 4, 4), vr(Q + 8 * qt + 4, 4), vr(d, 16))]

    def MP(u):
        kt, qt = u // 4, u % 4
        d = O + 16 * qt
        vb = VB + 8 * (kt % KVD)
        p = PK + 8 * (u % 2)
        return ["v_mfma_f32_32x32x16_bf16 %s, %s, %s, %s" % (vr(d, 16), vr(vb, 4), vr(p, 4), "0" if kt == 0 else vr(d, 16)),
                "v_mfma_f32_32x32x16_bf16 %s, %s, %s, %s" % (vr(d, 16), vr(vb + 4, 4), vr(p + 4, 4), vr(d, 16))]

    def EX(u):
        d = S + 16 * (u % 2)
        return ["v_exp_f32 v%d, v%d" % (d + i, d + i) for i in range(16)]

    def CV(u):
        d = S + 16 * (u % 2)
        p = PK + 8 * (u % 2)
        return ["v_cvt_pk_bf16_f32 v%d, v%d, v%d" % (p + i, d + 2 * i, d + 2 * i + 1) for i in range(8)]

    NU = 64
    vm.wait(("Q", 0))
    a.stamp(2)
    for x in MS(0):
        a(x)
    a("s_nop 7")
    a("s_nop 3")
    for u in range(NU + 1):
        ms = MS(u + 1) if u + 1 < NU else []
        mp = MP(u - 1) if u >= 1 else []
        ex = EX(u) if u < NU else []
        cv = CV(u) if u < NU else []
        if ms and (u + 1) % 4 == 0:
            vm.wait(("K", (u + 1) // 4))
        if ms and u + 1 < 4:
            vm.wait(("Q", u + 1))
        if mp and (u - 1) % 4 == 0:
            vm.wait(("V", (u - 1) // 4))
        pend = None
        if u % 4 == 1 and u >= 5 and (u - 5) // 4 + KVD < 16:
            pend = (u - 5) // 4 + KVD
        elif u < KVD - KV0:
            pend = KV0 + u
        if u == NU:
            a("s_nop 1")
            for x in mp:
                a(x)
            break
        mm = ms + mp
        seq = mm[0:1] + ex[0:3] + mm[1:2] + ex[3:6] + mm[2:3] + ex[6:9] + mm[3:4] + ex[9:16] + cv
        for x in seq:
            a(x)
        if pend is not None:
            ldgroup(pend)
    a.stamp(3)
    for k in (1, 2):
        for quad in range(4):
            a("ds_write_b128 v%d, %s offset:%d" % (vWr, vr(O + 16 * k + 4 * quad, 4), (k - 1) * 4096 + quad * 1024))
    a("v_mov_b32 v%d, %s" % (t1, f32hex(2.0 ** 28)))
    a("v_add_f32 v%d, v%d, v%d" % (t2, O + 12, O + 16 + 12))
    a("v_add_f32 v%d, v%d, v%d" % (t2, t2, O + 32 + 12))
    a("s_nop 1")
    for quad in range(4):
        a("ds_write_b128 v%d, %s offset:%d" % (vWr, vr(O + 48 + 4 * quad, 4), 2 * 4096 + quad * 1024))
    a("v_add_f32 v%d, v%d, v%d" % (t2, t2, O + 48 + 12))
    a("v_cmp_nle_f32 vcc, v%d, v%d" % (t2, t1))
    a("s_nop 1")
    a("s_cmp_lg_u32 vcc_hi, 0")
    a("s_cselect_b32 s%d, 2, 1" % sT0)
    a("v_mov_b32 v%d, s%d" % (t0, sT0))
    a("ds_write_b32 v%d, v%d" % (vFw, t0))
    poll(vF, 0, S)
    a.stamp(4)
    R = 144
    for k in range(1, 4):
        for quad in range(4):
            a("ds_read_b128 %s, v%d offset:%d" % (vr(R + 16 * (k - 1) + 4 * quad, 4), vRd[k - 1], quad * 1024))
    a("v_or3_b32 v%d, v%d, v%d, v%d" % (t0, S, S + 1, S + 2))
    a("v_or_b32 v%d, v%d, v%d" % (t0, t0, S + 3))
    a("s_nop 0")
    a("v_readfirstlane_b32 s%d, v%d" % (sT0, t0))
    a("s_andn2_b32 s%d, s%d, s%d" % (sT0, sT0, sPass))
    a("s_bitcmp1_b32 s%d, 1" % sT0)
    a("s_cbranch_scc1 k2_fallback")
    for k in range(3):
        a("s_waitcnt lgkmcnt(%d)" % (8 - 4 * k))
        for i in range(16):
            a("v_add_f32 v%d, v%d, v%d" % (O + i, O + i, R + 16 * k + i))
    a("v_mov_b32 v%d, v%d" % (t0, O + 12))
    a("v_mov_b32 v%d, v%d" % (t1, O + 12))
    a("s_nop 1")
    a("v_permlane32_swap_b32 v%d, v%d" % (t0, t1))
    a("s_nop 1")
    a("v_rcp_f32 v%d, v%d" % (t1, t1))
    a("s_nop 0")
    for i in range(16):
        a("v_mul_f32 v%d, v%d, v%d" % (O + i, t1, O + i))
    for i in range(8):
        a("v_cvt_pk_bf16_f32 v%d, v%d, v%d" % (R + i, O + 2 * i, O + 2 * i + 1))
    STP = opt.get("stpol2", "")
    for ii in range(4):
        if ii == 3:
            a("s_mov_b32 exec_hi, 0")
        a("buffer_store_dwordx2 %s, v%d, %s, 0 offen %s" % (vr(R + 2 * ii, 2), vOA[ii], sr(sWS, 4), STP))
    a("s_mov_b32 exec_hi, -1")
    if a.stamps:
        a("s_waitcnt vmcnt(0)")
    a.stamp(5); a.stamp(7, True)
    a.stamp_flush()
    a("s_endpgm")

    def set_shift(qt, m):
        t0, t1, t2 = vT[0], vT[1], vT[2]
        a("v_cvt_pk_bf16_f32 v%d, v%d, v%d" % (t0, m, m))
        a("v_lshlrev_b32 v%d, 16, v%d" % (t0, t0))
        a("v_sub_f32 v%d, v%d, v%d" % (t1, m, t0))
        a("v_cvt_pk_bf16_f32 v%d, v%d, v%d" % (t0, t1, t1))
        a("v_lshlrev_b32 v%d, 16, v%d" % (t0, t0))
        a("v_sub_f32 v%d, v%d, v%d" % (t2, t1, t0))
        a("s_mov_b32 exec_lo, 0")
        a("v_cvt_pk_bf16_f32 v%d, -v%d, -v%d" % (Q + 8 * qt + 6, m, t1))
        a("v_cvt_pk_bf16_f32 v%d, -v%d, 0" % (Q + 8 * qt + 7, t2))
        a("s_mov_b32 exec_lo, -1")

    def max16(dst, src):
        for i in range(0, 16, 2):
            a("v_max3_f32 v%d, v%d, v%d, v%d" % (dst, dst, src + i, src + i + 1))

    def cross_half_max(m):
        t0, t1 = vT[3], vT[4]
        a("v_mov_b32 v%d, v%d" % (t0, m))
        a("v_mov_b32 v%d, v%d" % (t1, m))
        a("s_nop 1")
        a("v_permlane32_swap_b32 v%d, v%d" % (t0, t1))
        a("s_nop 1")
        a("v_max_f32 v%d, v%d, v%d" % (m, t0, t1))

    a.label("k2_fallback")
    a("s_waitcnt lgkmcnt(0)")
    a("s_mov_b32 s%d, 2" % sPass)
    a("s_mov_b32 exec_lo, 0")
    for qt in range(4):
        a("v_mov_b32 v%d, 0" % (Q + 8 * qt + 6))
        a("v_mov_b32 v%d, 0" % (Q + 8 * qt + 7))
    a("s_mov_b32 exec_lo, -1")
    for qt in range(4):
        a("v_mov_b32 v%d, 0xff800000" % MX[qt])
    a("s_mov_b32 s%d, s%d" % (sKV, sKVb))
    a("s_mov_b32 s%d, 0" % sCnt)
    a.label("k2_fb_loop")
    ld(KB, sKV, 0)
    ld(KB + 4, sKV, 1024)
    a("s_add_u32 s%d, s%d, 4096" % (sKV, sKV))
    a("s_waitcnt vmcnt(0)")
    for qt in range(4):
        mfma(O + 16 * qt, KB, Q + 8 * qt, "0")
        mfma(O + 16 * qt, KB + 4, Q + 8 * qt + 4, vr(O + 16 * qt, 16))
    a("s_nop 7")
    a("s_nop 7")
    for qt in range(4):
        max16(MX[qt], O + 16 * qt)
    a("s_add_u32 s%d, s%d, 1" % (sCnt, sCnt))
    a("s_cmp_lt_u32 s%d, 16" % sCnt)
    a("s_cbranch_scc1 k2_fb_loop")
    for qt in range(4):
        cross_half_max(MX[qt])
    vM = vT[5:9]
    for qt in range(4):
        a("s_add_u32 s%d, s%d, %d" % (sT0, sWave, qt))
        a("s_and_b32 s%d, s%d, 3" % (sT0, sT0))
        a("s_lshl_b32 s%d, s%d, 8" % (sT0, sT0))
        a("s_add_u32 s%d, s%d, 0x%x" % (sT0, sT0, L_MX))
        a("v_lshl_add_u32 v%d, v%d, 2, s%d" % (vM[qt], l, sT0))
    a("s_lshl_b32 s%d, s%d, 10" % (sT0, sWave))
    for qt in range(4):
        a("v_add_u32 v%d, s%d, v%d" % (t0, sT0, vM[qt]))
        a("ds_write_b32 v%d, v%d" % (t0, MX[qt]))
    a("v_mov_b32 v%d, 1" % t0)
    a("ds_write_b32 v%d, v%d offset:16" % (vFw, t0))
    poll(vF, 16, S)
    for w in range(4):
        for qt in range(4):
            a("ds_read_b32 v%d, v%d offset:%d" % (S + 4 * w + qt, vM[qt], w * 1024))
    a("s_waitcnt lgkmcnt(0)")
    for qt in range(4):
        a("v_max3_f32 v%d, v%d, v%d, v%d" % (MX[qt], S + qt, S + 4 + qt, S + 8 + qt))
        a("v_max_f32 v%d, v%d, v%d" % (MX[qt], MX[qt], S + 12 + qt))
    for qt in range(4):
        set_shift(qt, MX[qt])
    a("v_add_u32 v%d, 32, v%d" % (vF, vF))
    a("v_add_u32 v%d, 32, v%d" % (vFw, vFw))
    a("s_branch k2_attn_main")

    a.label("k2_gemm")
    a("s_sub_u32 s%d, s%d, 4" % (sWave, sWave))
    a("s_cmp_ge_u32 s%d, 28" % sT)
    a("s_cbranch_scc1 k2_gate")
    HD = opt.get("hd", 4)
    WD = opt.get("wd", 3)
    ACC, HB = 32, 160
    WB = HB + 16 * HD
    nv = max(VB + 8 * KVD, WB + 16)
    vH = [12, 13, 14, 15]
    vD = 16
    vRA = [17, 18]
    sRb, sCb, sKh, sRot = sMb, sJ, sPass, sCnt
    a("s_mul_i32 s%d, s%d, 37" % (sT0, sT))
    a("s_lshr_b32 s%d, s%d, 8" % (sT0, sT0))
    a("s_mul_i32 s%d, s%d, 7" % (sT1, sT0))
    a("s_sub_u32 s%d, s%d, s%d" % (sCb, sT, sT1))
    a("s_lshr_b32 s%d, s%d, 1" % (sT2, sXcd))
    a("s_lshl_b32 s%d, s%d, 2" % (sT2, sT2))
    a("s_add_u32 s%d, s%d, s%d" % (sRb, sT0, sT2))
    a("s_and_b32 s%d, s%d, 1" % (sKh, sXcd))
    a("s_lshl_b32 s%d, s%d, 1" % (sT0, sT0))
    a("s_add_u32 s%d, s%d, s%d" % (sRot, sCb, sT0))
    a("s_sub_u32 s%d, s%d, 7" % (sT0, sRot))
    a("s_cmp_ge_u32 s%d, 7" % sRot)
    a("s_cselect_b32 s%d, s%d, s%d" % (sRot, sT0, sRot))
    if not opt.get("grot", 1):
        a("s_mov_b32 s%d, 0" % sRot)
    a("s_lshl_b32 s%d, s%d, 11" % (sHo, sRot))
    a("s_mul_i32 s%d, s%d, %d" % (sWo, sRot, 32 * 896))
    a("s_mul_i32 s%d, s%d, 28" % (sT0, sKh))
    a("s_mul_i32 s%d, s%d, 7" % (sT1, sWave))
    a("s_add_u32 s%d, s%d, s%d" % (sT0, sT0, sT1))
    for r in range(4):
        a("s_add_u32 s%d, s%d, %d" % (sT1, sWave, r))
        a("s_and_b32 s%d, s%d, 3" % (sT1, sT1))
        a("s_lshl_b32 s%d, s%d, 2" % (sT2, sRb))
        a("s_add_u32 s%d, s%d, s%d" % (sT1, sT1, sT2))
        a("s_mul_i32 s%d, s%d, 56" % (sT1, sT1))
        a("s_add_u32 s%d, s%d, s%d" % (sT1, sT1, sT0))
        a("s_lshl_b32 s%d, s%d, 11" % (sT1, sT1))
        a("s_add_u32 s%d, s%d, 0x%x" % (sT1, sT1, WS_H))
        a("v_add_u32 v%d, s%d, v%d" % (vH[r], sT1, vSt))
    t0, t1, t2, t3, t4 = vT[0:5]
    a("v_lshrrev_b32 v%d, 3, v%d" % (t0, l))
    a("v_and_b32 v%d, 7, v%d" % (t1, l))
    a("v_bfe_u32 v%d, v%d, 4, 1" % (t2, l))
    a("v_lshlrev_b32 v%d, 2, v%d" % (t3, t2))
    a("v_xor_b32 v%d, v%d, v%d" % (t1, t1, t3))
    a("v_mul_u32_u24 v%d, 896, v%d" % (t0, t0))
    a("v_lshl_add_u32 v%d, v%d, 4, v%d" % (t0, t1, t0))
    a("s_mul_i32 s%d, s%d, %d" % (sT0, sT0, 32 * 896))
    a("s_lshl_b32 s%d, s%d, 7" % (sT1, sCb))
    a("s_add_u32 s%d, s%d, s%d" % (sT0, sT0, sT1))
    a("v_add_u32 v%d, s%d, v%d" % (vD, sT0, t0))
    a("s_mul_i32 s%d, s%d, 24576" % (sRing, sWave))
    a("s_add_u32 s%d, s%d, 0x%x" % (sRing, sRing, L_GEMM))
    a("s_waitcnt lgkmcnt(0)")
    make_srd(a, sWS, 12, 13, WS_SIZE)
    make_srd(a, sWD, 8, 9, 1792 * 896)
    if opt.get("gearly"):
        pass
    else:
        a("s_barrier")
    vg = Cnt(a, "vmcnt")
    if opt.get("gprio", 0):
        a("s_setprio %d" % opt["gprio"])

    def ldW(T):
        for i in range(4):
            a("s_add_u32 m0, s%d, %d" % (sRing, (T % WD) * 4096 + i * 1024))
            a("s_nop 0")
            a("buffer_load_dwordx4 v%d, %s, s%d offen lds" % (vD, sr(sWD, 4), sWo))
            vg.issue(("W", T))
            a("s_add_u32 s%d, s%d, %d" % (sWo, sWo, 8 * 896))
        a("s_cmp_eq_u32 s%d, %d" % (sWo, 7 * 32 * 896))
        a("s_cselect_b32 s%d, 0, s%d" % (sWo, sWo))
    def ldH(i):
        for r in range(4):
            a("buffer_load_dwordx4 %s, v%d, %s, s%d offen offset:%d" % (vr(HB + 16 * (i % HD) + 4 * r, 4), vH[r], sr(sWS, 4), sHo, (i % 2) * 1024))
            vg.issue(("H", i))
        if i % 2 == 1:
            a("s_add_u32 s%d, s%d, 2048" % (sHo, sHo))
            a("s_cmp_eq_u32 s%d, %d" % (sHo, 7 * 2048))
            a("s_cselect_b32 s%d, 0, s%d" % (sHo, sHo))
    def greads(i):
        T, aa = i // 2, i % 2
        for c in range(2):
            for half in range(2):
                a("ds_read_b64_tr_b16 %s, v%d offset:%d" % (vr(WB + 8 * (i % 2) + 4 * c + 2 * half, 2), vRA[c], (T % WD) * 4096 + aa * 1024 + half * 2048))

    hi_, wi_ = 0, 0
    H0, W0 = opt.get("h0", HD), opt.get("w0", WD)
    while hi_ < H0 or wi_ < W0:
        if wi_ < W0 and 2 * wi_ <= hi_ or hi_ >= H0:
            ldW(wi_); wi_ += 1
        else:
            ldH(hi_); hi_ += 1
    if opt.get("gearly"):
        a("s_barrier")
    a("v_lshrrev_b32 v%d, 5, v%d" % (t0, l))
    a("v_bfe_u32 v%d, v%d, 2, 2" % (t1, l))
    a("v_lshl_add_u32 v%d, v%d, 2, v%d" % (t0, t0, t1))
    a("v_lshlrev_b32 v%d, 7, v%d" % (t0, t0))
    a("v_lshrrev_b32 v%d, 1, v%d" % (t1, t1))
    a("v_lshl_add_u32 v%d, v%d, 6, v%d" % (t0, t1, t0))
    a("v_lshl_add_u32 v%d, v%d, 5, v%d" % (t0, t2, t0))
    a("v_and_b32 v%d, 3, v%d" % (t1, l))
    a("v_lshl_add_u32 v%d, v%d, 3, v%d" % (t0, t1, t0))
    a("v_add_u32 v%d, s%d, v%d" % (vRA[0], sRing, t0))
    a("v_xor_b32 v%d, 64, v%d" % (vRA[1], vRA[0]))
    vWr2, vF2, vFw2 = 19, 20, 21
    vRd2 = [22, 23, 24]
    a("v_add_u32 v%d, s%d, v%d" % (vWr2, sRing, vSt))
    a("v_mov_b32 v%d, 0x%x" % (vF2, L_FLG + 64))
    a("s_lshl_b32 s%d, s%d, 2" % (sT0, sWave))
    a("v_add_u32 v%d, s%d, v%d" % (vFw2, sT0, vF2))
    for k in range(1, 4):
        a("s_sub_u32 s%d, s%d, %d" % (sT0, sWave, k))
        a("s_and_b32 s%d, s%d, 3" % (sT0, sT0))
        a("s_mul_i32 s%d, s%d, 24576" % (sT0, sT0))
        a("s_add_u32 s%d, s%d, %d" % (sT0, sT0, L_GEMM + (k - 1) * 8192))
        a("v_add_u32 v%d, s%d, v%d" % (vRd2[k - 1], sT0, vSt))
    a("s_lshl_b32 s%d, s%d, 2" % (sT0, sRb))
    a("s_add_u32 s%d, s%d, s%d" % (sT0, sT0, sWave))
    a("s_mul_i32 s%d, s%d, 7" % (sT0, sT0))
    a("s_add_u32 s%d, s%d, s%d" % (sT0, sT0, sCb))
    a("s_lshl_b32 s%d, s%d, 12" % (sT0, sT0))
    a("s_lshl_b32 s%d, s%d, 21" % (sT1, sKh))
    a("s_add_u32 s%d, s%d, s%d" % (sT0, sT0, sT1))
    a("s_add_u32 s%d, s%d, 0x%x" % (sBo, sT0, WS_B))
    a.stamp(1)
    vg.wait(("W", 0))
    a.stamp(2)
    greads(0)
    NK = 14
    for i in range(NK):
        if i + 1 < NK:
            vg.wait(("W", (i + 1) // 2))
            greads(i + 1)
            vg.wait(("H", i))
            a("s_waitcnt lgkmcnt(4)")
        else:
            vg.wait(("H", i))
            a("s_waitcnt lgkmcnt(0)")
        for c in range(2):
            for r in range(4):
                d = ACC + 16 * (2 * r + c)
                mfma(d, WB + 8 * (i % 2) + 4 * c, HB + 16 * (i % HD) + 4 * r, "0" if i == 0 else vr(d, 16))
        n = 0
        while wi_ < 7 and wi_ - WD <= (i - 1) // 2 and (n < 1 or 2 * wi_ <= i + 2):
            ldW(wi_); wi_ += 1; n += 1
        n = 0
        while hi_ < NK and hi_ - HD <= i and n < 2:
            ldH(hi_); hi_ += 1; n += 1
    a.stamp(3)
    a("s_nop 7")
    a("s_nop 3")
    for k in range(1, 4):
        for q in range(8):
            a("ds_write_b128 v%d, %s offset:%d" % (vWr2, vr(ACC + 32 * k + 4 * q, 4), (k - 1) * 8192 + q * 1024))
    a("v_mov_b32 v%d, 1" % t0)
    a("ds_write_b32 v%d, v%d" % (vFw2, t0))
    poll(vF2, 0, HB)
    a.stamp(4)
    R = ACC + 32
    for k in range(1, 4):
        for q in range(8):
            a("ds_read_b128 %s, v%d offset:%d" % (vr(R + 32 * (k - 1) + 4 * q, 4), vRd2[k - 1], q * 1024))
        if k >= 2:
            a("s_waitcnt lgkmcnt(8)")
            for i in range(32):
                a("v_add_f32 v%d, v%d, v%d" % (ACC + i, ACC + i, R + 32 * (k - 2) + i))
    a("s_waitcnt lgkmcnt(0)")
    for i in range(32):
        a("v_add_f32 v%d, v%d, v%d" % (ACC + i, ACC + i, R + 64 + i))
    for i in range(16):
        a("v_cvt_pk_bf16_f32 v%d, v%d, v%d" % (R + i, ACC + 2 * i, ACC + 2 * i + 1))
    for q in range(4):
        a("buffer_store_dwordx4 %s, v%d, %s, s%d offen offset:%d %s" % (vr(R + 4 * q, 4), vSt, sr(sWS, 4), sBo, q * 1024, STP))
    if a.stamps:
        a("s_waitcnt vmcnt(0)")
    a.stamp(5); a.stamp(7, True)
    a.stamp_flush()
    a("s_endpgm")

    a.label("k2_gate")
    sX, sG = 20, 24
    a("s_waitcnt lgkmcnt(0)")
    make_srd(a, sWS, 12, 13, WS_SIZE)
    make_srd(a, sX, 4, 5, 2048 * 896)
    make_srd(a, sG, 10, 11, 896)
    a("s_barrier")
    a("s_lshl_b32 s%d, s%d, 2" % (sT0, sXcd))
    a("s_add_u32 s%d, s%d, s%d" % (sT0, sT0, sT))
    a("s_sub_u32 s%d, s%d, 28" % (sT0, sT0))
    a("s_lshl_b32 s%d, s%d, 2" % (sT0, sT0))
    a("s_add_u32 s%d, s%d, s%d" % (sT0, sT0, sWave))
    a("s_lshl_b32 s%d, s%d, 4" % (sT0, sT0))
    t0, t1, t2, t3, t4, t5, t6 = vT[0:7]
    a("v_lshrrev_b32 v%d, 2, v%d" % (t0, l))
    a("v_add_u32 v%d, s%d, v%d" % (t0, sT0, t0))
    a("v_and_b32 v%d, 3, v%d" % (t1, l))
    a("v_lshlrev_b32 v%d, 4, v%d" % (t1, t1))
    a("v_mul_u32_u24 v%d, 896, v%d" % (t2, t0))
    a("v_add_u32 v%d, v%d, v%d" % (t2, t2, t1))
    for i in range(14):
        a("buffer_load_dwordx4 %s, v%d, %s, 0 offen offset:%d" % (vr(32 + 4 * i, 4), t2, sr(sX, 4), 64 * i))
        a("buffer_load_dwordx4 %s, v%d, %s, 0 offen offset:%d" % (vr(96 + 4 * i, 4), t1, sr(sG, 4), 64 * i))
    a("v_mov_b32 v%d, 0" % t3)
    a("v_mov_b32 v%d, 0" % t4)
    a("s_waitcnt vmcnt(0)")
    for i in range(56):
        xr, gr = 32 + i, 96 + i
        a("v_lshlrev_b32 v%d, 16, v%d" % (t5, xr))
        a("v_lshlrev_b32 v%d, 16, v%d" % (t6, gr))
        a("v_fmac_f32 v%d, v%d, v%d" % (t3, t5, t6))
        a("v_and_b32 v%d, 0xffff0000, v%d" % (t5, xr))
        a("v_and_b32 v%d, 0xffff0000, v%d" % (t6, gr))
        a("v_fmac_f32 v%d, v%d, v%d" % (t4, t5, t6))
    a("v_add_f32 v%d, v%d, v%d" % (t3, t3, t4))
    a("s_nop 1")
    a("v_add_f32_dpp v%d, v%d, v%d quad_perm:[1,0,3,2] row_mask:0xf bank_mask:0xf" % (t4, t3, t3))
    a("s_nop 1")
    a("v_add_f32_dpp v%d, v%d, v%d quad_perm:[2,3,0,1] row_mask:0xf bank_mask:0xf" % (t3, t4, t4))
    a("v_mul_f32 v%d, %s, v%d" % (t3, f32hex(-LOG2E), t3))
    a("v_exp_f32 v%d, v%d" % (t3, t3))
    a("s_nop 0")
    a("v_add_f32 v%d, 1.0, v%d" % (t3, t3))
    a("v_rcp_f32 v%d, v%d" % (t3, t3))
    a("v_lshlrev_b32 v%d, 2, v%d" % (t0, t0))
    a("s_mov_b32 s%d, 0x%x" % (sT0, WS_G))
    a("buffer_store_dword v%d, v%d, %s, s%d offen" % (t3, t0, sr(sWS, 4), sT0))
    a("s_endpgm")
    a.label("k2_exit")
    a("s_endpgm")
    return ("; @launch kernel=%s grid=(256,1,1) block=(512,1,1) lds=%d" % (name, K2_LDS), kernel_desc(name, nv))
```

```python
from gen import *
from gen_k2 import VM

K3_LDS = 64 * 1024

def gen_k3(a, opt={}):
    name = "k3_kernel"
    kernel_head(a, name)
    sWS, sWO, sOUT = 16, 20, 24
    sWave, sRb, sCb, sXcd, sT = 28, 29, 30, 31, 32
    sT0, sT1, sT2, sT3 = 33, 34, 35, 36
    sO0, sO1, sWoff, sRing = 37, 38, 39, 40
    vLane, vSt = 1, 2
    vT = [3, 4, 5, 6, 7, 8, 9, 10]
    vD = [[11, 12], [13, 14]]
    vRA, vA, vG, vOut = 15, 16, 17, 18
    BB = 20
    ACC, OB, WB = 32, 96, 160
    nv = 176
    l = vLane
    a("s_cmp_ge_u32 s2, 256")
    a("s_cbranch_scc1 k3_exit")
    a("s_lshr_b32 s%d, s2, 3" % sT)
    a("s_cmp_ge_u32 s%d, 28" % sT)
    a("s_cbranch_scc1 k3_exit")
    a.stamp_init(); a.stamp(0); a.stamp(6, True)
    a("s_load_dwordx2 s[12:13], s[0:1], 80")
    a("s_load_dwordx2 s[8:9], s[0:1], 16")
    a("s_load_dwordx2 s[10:11], s[0:1], 64")
    a("v_and_b32 v%d, 63, v0" % vLane)
    a("v_lshrrev_b32 v%d, 6, v0" % vT[0])
    a("s_and_b32 s%d, s2, 7" % sXcd)
    a("v_readfirstlane_b32 s%d, v%d" % (sWave, vT[0]))
    a("v_lshlrev_b32 v%d, 4, v%d" % (vSt, l))
    a("s_mul_i32 s%d, s%d, 37" % (sT0, sT))
    a("s_lshr_b32 s%d, s%d, 8" % (sT0, sT0))
    a("s_mul_i32 s%d, s%d, 7" % (sT1, sT0))
    a("s_sub_u32 s%d, s%d, s%d" % (sCb, sT, sT1))
    a("s_lshl_b32 s%d, s%d, 2" % (sT2, sXcd))
    a("s_add_u32 s%d, s%d, s%d" % (sRb, sT0, sT2))
    a("s_lshl_b32 s%d, s%d, 5" % (sT0, sRb))
    a("s_lshl_b32 s%d, s%d, 2" % (sT1, sWave))
    a("s_add_u32 s%d, s%d, s%d" % (sT0, sT0, sT1))
    a("s_lshl_b32 s%d, s%d, 11" % (sO0, sT0))
    a("s_add_u32 s%d, s%d, 0x%x" % (sO0, sO0, WS_O))
    a("s_add_u32 s%d, s%d, %d" % (sO1, sO0, 16 * 2048))
    a("s_mul_i32 s%d, s%d, %d" % (sWoff, sWave, 4 * 28 * 896))
    a("s_lshl_b32 s%d, s%d, 7" % (sT2, sCb))
    a("s_add_u32 s%d, s%d, s%d" % (sWoff, sWoff, sT2))
    a("s_lshl_b32 s%d, s%d, 14" % (sRing, sWave))
    t0, t1, t2, t3, t4 = vT[0:5]
    a("v_lshrrev_b32 v%d, 2, v%d" % (t0, l))
    a("v_and_b32 v%d, 3, v%d" % (t1, l))
    a("v_mul_u32_u24 v%d, 896, v%d" % (t2, t0))
    a("v_lshl_add_u32 v%d, v%d, 4, v%d" % (vD[0][0], t1, t2))
    a("v_add_u32 v%d, 64, v%d" % (vD[0][1], vD[0][0]))
    a("v_lshrrev_b32 v%d, 5, v%d" % (t3, l))
    a("v_mul_u32_u24 v%d, %d, v%d" % (t4, 4 * 896, t3))
    a("v_sub_u32 v%d, v%d, v%d" % (t4, vD[0][0], t4))
    a("v_add_u32 v%d, %d, v%d" % (vD[1][0], 16 * 896, t4))
    a("v_add_u32 v%d, 64, v%d" % (vD[1][1], vD[1][0]))
    a("v_bfe_u32 v%d, v%d, 2, 2" % (t2, l))
    a("v_lshl_add_u32 v%d, v%d, 2, v%d" % (t2, t3, t2))
    a("v_bfe_u32 v%d, v%d, 4, 1" % (t4, l))
    a("v_lshlrev_b32 v%d, 3, v%d" % (t1, t1))
    a("v_lshl_add_u32 v%d, v%d, 6, v%d" % (t2, t2, t1))
    a("v_lshl_add_u32 v%d, v%d, 5, v%d" % (t2, t4, t2))
    a("v_add_u32 v%d, s%d, v%d" % (vRA, sRing, t2))
    a("s_and_b32 s%d, s%d, 1" % (sT0, sWave))
    a("s_lshl_b32 s%d, s%d, 1" % (sT1, sRb))
    a("s_add_u32 s%d, s%d, s%d" % (sT0, sT0, sT1))
    a("s_lshr_b32 s%d, s%d, 1" % (sT1, sWave))
    a("s_lshl_b32 s%d, s%d, 1" % (sT2, sCb))
    a("s_add_u32 s%d, s%d, s%d" % (sT1, sT1, sT2))
    a("s_lshl_b32 s%d, s%d, 5" % (sT2, sT0))
    a("v_and_b32 v%d, 31, v%d" % (t0, l))
    a("v_add_u32 v%d, s%d, v%d" % (t0, sT2, t0))
    a("v_lshlrev_b32 v%d, 2, v%d" % (vG, t0))
    a("v_mul_u32_u24 v%d, 896, v%d" % (t0, t0))
    a("v_lshl_add_u32 v%d, v%d, 4, v%d" % (t0, t3, t0))
    a("s_lshl_b32 s%d, s%d, 6" % (sT2, sT1))
    a("v_add_u32 v%d, s%d, v%d" % (vOut, sT2, t0))
    a("s_mul_i32 s%d, s%d, 14" % (sT0, sT0))
    a("s_add_u32 s%d, s%d, s%d" % (sT0, sT0, sT1))
    a("s_lshl_b32 s%d, s%d, 11" % (sT0, sT0))
    a("s_add_u32 s%d, s%d, 0x%x" % (sT0, sT0, WS_B))
    a("s_mov_b32 s%d, 0x%x" % (sT1, WS_G))
    a("s_waitcnt lgkmcnt(0)")
    a.stamp(1)
    make_srd(a, sWS, 12, 13, WS_SIZE)
    make_srd(a, sWO, 8, 9, 448 * 896)
    make_srd(a, sOUT, 10, 11, 2048 * 896)
    vg = VM(a)
    NK = 8
    for i in range(NK):
        hh, f = i // 2, i % 2
        for c in range(2):
            a("s_add_u32 m0, s%d, %d" % (sRing, i * 2048 + c * 1024))
            a("s_nop 0")
            a("buffer_load_dwordx4 v%d, %s, s%d offen lds" % (vD[f][c], sr(sWO, 4), sWoff))
            vg.issue(("W", i))
        if f == 1:
            a("s_add_u32 s%d, s%d, %d" % (sWoff, sWoff, 28 * 896))
        for r in range(2):
            a("buffer_load_dwordx4 %s, v%d, %s, s%d offen offset:%d" % (vr(OB + 8 * i + 4 * r, 4), vSt, sr(sWS, 4), sO0 if r == 0 else sO1, (i % 4) * 1024))
            vg.issue(("H", i))
        if i == 0:
            a.stamp(2)
        if i == 3:
            a.stamp(3)
        if i % 4 == 3:
            a("s_add_u32 s%d, s%d, 4096" % (sO0, sO0))
            a("s_add_u32 s%d, s%d, 4096" % (sO1, sO1))
    a("buffer_load_dwordx4 %s, v%d, %s, s%d offen" % (vr(BB, 4), vSt, sr(sWS, 4), sT0)); vg.issue("B")
    a("buffer_load_dwordx4 %s, v%d, %s, s%d offen offset:1024" % (vr(BB + 4, 4), vSt, sr(sWS, 4), sT0)); vg.issue("B")
    a("buffer_load_dword v%d, v%d, %s, s%d offen" % (vG, vG, sr(sWS, 4), sT1)); vg.issue("B")

    def greads(i):
        for c in range(2):
            for half in range(2):
                a("ds_read_b64_tr_b16 %s, v%d offset:%d" % (vr(WB + 8 * (i % 2) + 4 * c + 2 * half, 2), vRA, i * 2048 + c * 1024 + half * 512))
    def mfma(d, x, y, c):
        a("v_mfma_f32_32x32x16_bf16 %s, %s, %s, %s" % (vr(d, 16), vr(x, 4), vr(y, 4), c))
    a.stamp(4)
    vg.wait(("W", 0))
    greads(0)
    for i in range(NK):
        if i + 1 < NK:
            vg.wait(("W", i + 1))
            greads(i + 1)
            a("s_waitcnt lgkmcnt(4)")
        else:
            vg.wait(("H", i))
            a("s_waitcnt lgkmcnt(0)")
        for c in range(2):
            for r in range(2):
                d = ACC + 16 * (2 * c + r)
                mfma(d, WB + 8 * (i % 2) + 4 * c, OB + 8 * i + 4 * r, "0" if i == 0 else vr(d, 16))
    a("v_add_u32 v%d, s%d, v%d" % (vA, sRing, vSt))
    a("s_nop 7")
    a("s_nop 3")
    for tl in range(4):
        a("s_cmp_eq_u32 s%d, %d" % (sWave, tl))
        a("s_cbranch_scc1 k3_gskip%d" % tl)
        for quad in range(4):
            a("ds_write_b128 v%d, %s offset:%d" % (vA, vr(ACC + 16 * tl + 4 * quad, 4), tl * 4096 + quad * 1024))
        a.label("k3_gskip%d" % tl)
    a("s_waitcnt lgkmcnt(0)")
    a("s_barrier")
    a("s_lshl_b32 s%d, s%d, 12" % (sT0, sWave))
    a("v_add_u32 v%d, s%d, v%d" % (vA, sT0, vSt))
    R = 96
    for w in range(4):
        a("s_cmp_lg_u32 s%d, %d" % (sWave, w))
        a("s_cbranch_scc1 k3_gred%d" % w)
        srcs = [x for x in range(4) if x != w]
        for i, sw in enumerate(srcs):
            for quad in range(4):
                a("ds_read_b128 %s, v%d offset:%d" % (vr(R + 16 * i + 4 * quad, 4), vA, sw * 16384 + quad * 1024))
        a("s_waitcnt lgkmcnt(8)")
        for i in range(16):
            a("v_add_f32 v%d, v%d, v%d" % (R + i, R + i, ACC + 16 * w + i))
        a("s_branch k3_gred_done")
        a.label("k3_gred%d" % w)
    a.label("k3_gred_done")
    a("s_waitcnt lgkmcnt(4)")
    for i in range(16):
        a("v_add_f32 v%d, v%d, v%d" % (R + i, R + i, R + 16 + i))
    a("s_waitcnt lgkmcnt(0)")
    for i in range(16):
        a("v_add_f32 v%d, v%d, v%d" % (R + i, R + i, R + 32 + i))
    vg.wait("B")
    for d in range(8):
        a("v_lshlrev_b32 v%d, 16, v%d" % (R + 16 + 2 * d, BB + d))
        a("v_and_b32 v%d, 0xffff0000, v%d" % (R + 16 + 2 * d + 1, BB + d))
    for i in range(16):
        a("v_sub_f32 v%d, v%d, v%d" % (R + i, R + i, R + 16 + i))
    for i in range(16):
        a("v_fmac_f32 v%d, v%d, v%d" % (R + 16 + i, vG, R + i))
    PKD = R + 32
    for i in range(8):
        a("v_cvt_pk_bf16_f32 v%d, v%d, v%d" % (PKD + i, R + 16 + 2 * i, R + 16 + 2 * i + 1))
    a("s_nop 1")
    for pr in range(2):
        b = PKD + 4 * pr
        a("v_permlane32_swap_b32 v%d, v%d" % (b, b + 2))
        a("v_permlane32_swap_b32 v%d, v%d" % (b + 1, b + 3))
    for pr in range(2):
        a("buffer_store_dwordx4 %s, v%d, %s, 0 offen offset:%d" % (vr(PKD + 4 * pr, 4), vOut, sr(sOUT, 4), 32 * pr))
    if a.stamps:
        a("s_waitcnt vmcnt(0)")
    a.stamp(5); a.stamp(7, True)
    a.stamp_flush()
    a.label("k3_exit")
    a("s_endpgm")
    return ("; @launch kernel=%s grid=(256,1,1) block=(256,1,1) lds=%d" % (name, K3_LDS), kernel_desc(name, nv))
```

```python
from gen import *
from gen_k1 import Cnt

K3_LDS = 64 * 1024

def gen_k3(a, opt={}):
    name = "k3_kernel"
    kernel_head(a, name)
    sWS, sWO, sOUT = 16, 20, 24
    sWave, sRb, sCb, sXcd, sT = 28, 29, 30, 31, 32
    sT0, sT1, sT2, sT3 = 33, 34, 35, 36
    sO0, sO1, sWoff, sRing, sB0, sB1 = 37, 38, 39, 40, 41, 42
    vLane, vSt = 1, 2
    vT = [3, 4, 5, 6, 7, 8, 9, 10]
    vD = 11
    vRA = [12, 13]
    vWr, vG, vOut = 14, 15, 16
    vRd = [17, 18, 19]
    BB = 20
    ACC, OB, WB = 36, 100, 156
    nv = 172
    l = vLane
    a("s_cmp_ge_u32 s2, 224")
    a("s_cbranch_scc1 k3_exit")
    a.stamp_init(); a.stamp(0); a.stamp(6, True)
    a("s_load_dwordx2 s[8:9], s[0:1], 16")
    a("s_load_dwordx2 s[12:13], s[0:1], 80")
    a("s_load_dwordx2 s[10:11], s[0:1], 64")
    a("s_lshr_b32 s%d, s2, 3" % sT)
    a("v_and_b32 v%d, 63, v0" % vLane)
    a("v_lshrrev_b32 v%d, 6, v0" % vT[0])
    a("s_and_b32 s%d, s2, 7" % sXcd)
    a("v_readfirstlane_b32 s%d, v%d" % (sWave, vT[0]))
    a("v_lshlrev_b32 v%d, 4, v%d" % (vSt, l))
    a("s_mul_i32 s%d, s%d, 37" % (sT0, sT))
    a("s_lshr_b32 s%d, s%d, 8" % (sT0, sT0))
    a("s_mul_i32 s%d, s%d, 7" % (sT1, sT0))
    a("s_sub_u32 s%d, s%d, s%d" % (sCb, sT, sT1))
    a("s_lshl_b32 s%d, s%d, 2" % (sT2, sXcd))
    a("s_add_u32 s%d, s%d, s%d" % (sRb, sT0, sT2))
    sRt, sCt = sT2, sT3
    a("s_and_b32 s%d, s%d, 1" % (sT0, sWave))
    a("s_lshl_b32 s%d, s%d, 1" % (sT1, sRb))
    a("s_add_u32 s%d, s%d, s%d" % (sRt, sT0, sT1))
    a("s_lshr_b32 s%d, s%d, 1" % (sT0, sWave))
    a("s_lshl_b32 s%d, s%d, 1" % (sT1, sCb))
    a("s_add_u32 s%d, s%d, s%d" % (sCt, sT0, sT1))
    a("s_mul_i32 s%d, s%d, 7" % (sT0, sWave))
    a("s_mul_i32 s%d, s%d, 28" % (sO0, sRt))
    a("s_add_u32 s%d, s%d, s%d" % (sO0, sO0, sT0))
    a("s_lshl_b32 s%d, s%d, 10" % (sO0, sO0))
    a("s_add_u32 s%d, s%d, 0x%x" % (sO0, sO0, WS_O))
    a("s_xor_b32 s%d, s%d, 1" % (sT1, sRt))
    a("s_mul_i32 s%d, s%d, 28" % (sO1, sT1))
    a("s_add_u32 s%d, s%d, s%d" % (sO1, sO1, sT0))
    a("s_lshl_b32 s%d, s%d, 10" % (sO1, sO1))
    a("s_add_u32 s%d, s%d, 0x%x" % (sO1, sO1, WS_O))
    a("s_mul_i32 s%d, s%d, %d" % (sWoff, sWave, 112 * 896))
    a("s_lshl_b32 s%d, s%d, 7" % (sT0, sCb))
    a("s_add_u32 s%d, s%d, s%d" % (sWoff, sWoff, sT0))
    a("s_lshl_b32 s%d, s%d, 14" % (sRing, sWave))
    t0, t1, t2, t3, t4 = vT[0:5]
    a("v_lshrrev_b32 v%d, 3, v%d" % (t0, l))
    a("v_and_b32 v%d, 7, v%d" % (t1, l))
    a("v_bfe_u32 v%d, v%d, 4, 1" % (t2, l))
    a("v_lshlrev_b32 v%d, 2, v%d" % (t3, t2))
    a("v_xor_b32 v%d, v%d, v%d" % (t1, t1, t3))
    a("v_mul_u32_u24 v%d, 896, v%d" % (t0, t0))
    a("v_lshl_add_u32 v%d, v%d, 4, v%d" % (vD, t1, t0))
    a("s_mul_i32 s%d, s%d, 14" % (sB0, sRt))
    a("s_add_u32 s%d, s%d, s%d" % (sB0, sB0, sCt))
    a("s_lshl_b32 s%d, s%d, 11" % (sB0, sB0))
    a("s_add_u32 s%d, s%d, 0x%x" % (sB0, sB0, WS_B))
    a("s_add_u32 s%d, s%d, 0x%x" % (sB1, sB0, 2 << 20))
    a("s_lshl_b32 s%d, s%d, 5" % (sT0, sRt))
    a("v_and_b32 v%d, 31, v%d" % (t4, l))
    a("v_add_u32 v%d, s%d, v%d" % (t4, sT0, t4))
    a("v_lshlrev_b32 v%d, 2, v%d" % (vG, t4))
    a("s_mov_b32 s%d, 0x%x" % (sT1, WS_G))
    a("s_waitcnt lgkmcnt(0)")
    a.stamp(1)
    make_srd(a, sWO, 8, 9, 448 * 896)
    make_srd(a, sWS, 12, 13, WS_SIZE)
    vg = Cnt(a, "vmcnt")
    NK = 7
    for i in range(NK):
        for h in range(2):
            a("s_add_u32 m0, s%d, %d" % (sRing, i * 2048 + h * 1024))
            a("s_nop 0")
            a("buffer_load_dwordx4 v%d, %s, s%d offen lds" % (vD, sr(sWO, 4), sWoff))
            vg.issue(("W", i))
            a("s_add_u32 s%d, s%d, %d" % (sWoff, sWoff, 8 * 896))
        for r in range(2):
            a("buffer_load_dwordx4 %s, v%d, %s, s%d offen offset:%d" % (vr(OB + 8 * i + 4 * r, 4), vSt, sr(sWS, 4), sO0 if r == 0 else sO1, (i % 4) * 1024))
            vg.issue(("H", i))
        if i % 4 == 3:
            a("s_add_u32 s%d, s%d, 4096" % (sO0, sO0))
            a("s_add_u32 s%d, s%d, 4096" % (sO1, sO1))
    for p in range(2):
        for f in range(2):
            a("buffer_load_dwordx4 %s, v%d, %s, s%d offen offset:%d" % (vr(BB + 8 * p + 4 * f, 4), vSt, sr(sWS, 4), sB0 if p == 0 else sB1, f * 1024)); vg.issue("B")
    a("buffer_load_dword v%d, v%d, %s, s%d offen" % (vG, vG, sr(sWS, 4), sT1)); vg.issue("B")
    a.stamp(2)
    make_srd(a, sOUT, 10, 11, 2048 * 896)
    a("v_lshrrev_b32 v%d, 5, v%d" % (t3, l))
    a("v_mul_u32_u24 v%d, 896, v%d" % (t4, t4))
    a("v_lshl_add_u32 v%d, v%d, 4, v%d" % (t4, t3, t4))
    a("s_lshl_b32 s%d, s%d, 6" % (sT0, sCt))
    a("v_add_u32 v%d, s%d, v%d" % (vOut, sT0, t4))
    a("v_bfe_u32 v%d, v%d, 2, 2" % (t1, l))
    a("v_lshl_add_u32 v%d, v%d, 2, v%d" % (t0, t3, t1))
    a("v_lshlrev_b32 v%d, 7, v%d" % (t0, t0))
    a("v_lshrrev_b32 v%d, 1, v%d" % (t1, t1))
    a("v_lshl_add_u32 v%d, v%d, 6, v%d" % (t0, t1, t0))
    a("v_lshl_add_u32 v%d, v%d, 5, v%d" % (t0, t2, t0))
    a("v_and_b32 v%d, 3, v%d" % (t1, l))
    a("v_lshl_add_u32 v%d, v%d, 3, v%d" % (t0, t1, t0))
    a("s_lshr_b32 s%d, s%d, 1" % (sT0, sWave))
    a("s_lshl_b32 s%d, s%d, 6" % (sT0, sT0))
    a("v_xor_b32 v%d, s%d, v%d" % (t0, sT0, t0))
    a("v_add_u32 v%d, s%d, v%d" % (vRA[0], sRing, t0))
    a("v_xor_b32 v%d, 64, v%d" % (vRA[1], vRA[0]))
    a("v_add_u32 v%d, s%d, v%d" % (vWr, sRing, vSt))
    for k in range(1, 4):
        a("s_xor_b32 s%d, s%d, %d" % (sT0, sWave, k))
        a("s_lshl_b32 s%d, s%d, 14" % (sT0, sT0))
        a("s_add_u32 s%d, s%d, %d" % (sT0, sT0, (k - 1) * 4096))
        a("v_add_u32 v%d, s%d, v%d" % (vRd[k - 1], sT0, vSt))

    def greads(i):
        for c in range(2):
            for half in range(2):
                a("ds_read_b64_tr_b16 %s, v%d offset:%d" % (vr(WB + 8 * (i % 2) + 4 * c + 2 * half, 2), vRA[c], i * 2048 + half * 1024))
    def mfma(d, x, y, c):
        a("v_mfma_f32_32x32x16_bf16 %s, %s, %s, %s" % (vr(d, 16), vr(x, 4), vr(y, 4), c))
    vg.wait(("W", 0))
    a.stamp(3)
    greads(0)
    for i in range(NK):
        if i + 1 < NK:
            vg.wait(("W", i + 1))
            greads(i + 1)
            a("s_waitcnt lgkmcnt(4)")
        else:
            vg.wait(("H", i))
            a("s_waitcnt lgkmcnt(0)")
        order = [(1, 1), (1, 0), (0, 1), (0, 0)]
        for c, r in order:
            d = ACC + 16 * (2 * c + r)
            mfma(d, WB + 8 * (i % 2) + 4 * c, OB + 8 * i + 4 * r, "0" if i == 0 else vr(d, 16))
    a.stamp(4)
    a("s_nop 7")
    a("s_nop 1")
    for k in (3, 2, 1):
        for quad in range(4):
            a("ds_write_b128 v%d, %s offset:%d" % (vWr, vr(ACC + 16 * k + 4 * quad, 4), (k - 1) * 4096 + quad * 1024))
    U = OB
    vg.wait("B")
    for d in range(8):
        a("v_lshlrev_b32 v%d, 16, v%d" % (U + 2 * d, BB + d))
        a("v_and_b32 v%d, 0xffff0000, v%d" % (U + 2 * d + 1, BB + d))
        a("v_lshlrev_b32 v%d, 16, v%d" % (U + 16 + 2 * d, BB + 8 + d))
        a("v_and_b32 v%d, 0xffff0000, v%d" % (U + 16 + 2 * d + 1, BB + 8 + d))
    a("s_waitcnt lgkmcnt(0)")
    a("s_barrier")
    R = ACC + 16
    for k in range(1, 4):
        for quad in range(4):
            a("ds_read_b128 %s, v%d offset:%d" % (vr(R + 16 * (k - 1) + 4 * quad, 4), vRd[k - 1], quad * 1024))
    for i in range(16):
        a("v_add_f32 v%d, v%d, v%d" % (U + i, U + i, U + 16 + i))
    for i in range(16):
        a("v_sub_f32 v%d, v%d, v%d" % (ACC + i, ACC + i, U + i))
    for k in range(3):
        a("s_waitcnt lgkmcnt(%d)" % (8 - 4 * k))
        for i in range(16):
            a("v_add_f32 v%d, v%d, v%d" % (ACC + i, ACC + i, R + 16 * k + i))
    for i in range(16):
        a("v_fmac_f32 v%d, v%d, v%d" % (U + i, vG, ACC + i))
    PKD = U + 16
    for i in range(8):
        a("v_cvt_pk_bf16_f32 v%d, v%d, v%d" % (PKD + i, U + 2 * i, U + 2 * i + 1))
    a("s_nop 1")
    for pr in range(2):
        b = PKD + 4 * pr
        a("v_permlane32_swap_b32 v%d, v%d" % (b, b + 2))
        a("v_permlane32_swap_b32 v%d, v%d" % (b + 1, b + 3))
    for pr in range(2):
        a("buffer_store_dwordx4 %s, v%d, %s, 0 offen offset:%d" % (vr(PKD + 4 * pr, 4), vOut, sr(sOUT, 4), 32 * pr))
    if a.stamps:
        a("s_waitcnt vmcnt(0)")
    a.stamp(5); a.stamp(7, True)
    a.stamp_flush()
    a.label("k3_exit")
    a("s_endpgm")
    return ("; @launch kernel=%s grid=(224,1,1) block=(256,1,1) lds=%d" % (name, K3_LDS), kernel_desc(name, nv))
```

```python
import sys, os
import gen
from gen import *
def main():
    out = sys.argv[1]
    which = sys.argv[2] if len(sys.argv) > 2 else "123"
    opt = {}
    for kv in sys.argv[3:]:
        k, v = kv.split("=")
        try: v = int(v)
        except ValueError: pass
        opt[k] = v
    if os.environ.get("STAMPS"):
        Asm.stamps = True
        Asm.stamp_wg = int(os.environ.get("STAMP_WG", "0"))
    if os.environ.get("WGTRACE"):
        Asm.wgtrace = True
    a = Asm()
    a.raw('.amdgcn_target "amdgcn-amd-amdhsa--gfx950"')
    a.raw(".text")
    hdr, descs = [], []
    gens = {}
    import gen_k1
    gens["1"] = gen_k1.gen_k1
    if "2" in which:
        import gen_k2v2
        gens["2"] = gen_k2v2.gen_k2
    if "3" in which:
        import gen_k3v2
        gens["3"] = gen_k3v2.gen_k3
    for c in which:
        h, d = gens[c](a, opt)
        hdr.append(h)
        descs.append(d)
    txt = "\n".join(hdr) + "\n" + a.text() + '.section .rodata,"a"\n' + "".join(descs)
    open(out, "w").write(txt)
main()
```

```python
import sys, os
from gen import Asm, vr, sr, kernel_head, make_srd, f32hex, LOG2E, QSCALE

WS_KV = 2 << 20
WS_H = 8 << 20
WS_O = 16 << 20
WS_F = 28 << 20
WS_P = 32 << 20
WS_T = 64 << 20
WS_SIZE = 256 << 20

L_X = 0
L_WQ = 65536
G2SZ = 12544
L_Q = 152576
L_G = L_Q + 8192
L_FLG = L_G + 512
F_LDS = L_FLG + 256
L_ATT = 0
L_WO = 49152
WOSZ = 25600
F_LAND, F_P, F_QRDY, F_QRD, F_DBG, F_LAND2, F_ATT, F_DN = 0, 16, 32, 48, 64, 80, 128, 192

GU_PLACE = [(65536, 2), (81920, 3), (49152, 3), (98304, 4), (0, 4), (16384, 5), (32768, 6),
            (114688, 6), (114688 + G2SZ, 7), (114688 + 2 * G2SZ, 7),
            (65536, 8), (81920, 9), (49152, 10), (98304, 11)]
D_PLACE = [(0, 12), (16384, 13), (32768, 14), (114688, 16), (129024, 17), (65536, 18), (81920, 19)]
assert L_WO + 4 * WOSZ <= L_Q
assert 114688 + 3 * G2SZ <= L_Q

TRACE = bool(os.environ.get("TRACE"))


class Cnt:
    def __init__(self, a, name, cap):
        self.a, self.name, self.q, self.cap = a, name, [], cap
    def issue(self, tag):
        self.q.append(tag)
    def wait(self, tag):
        idx = [i for i, t in enumerate(self.q) if t == tag]
        if not idx:
            return
        idx = max(idx)
        n = len(self.q) - 1 - idx
        n = min(n, self.cap)
        self.a("s_waitcnt %s(%d)" % (self.name, n))
        self.q = self.q[idx + 1:]
    def clear(self):
        self.q = []


def gen(opt):
    a = Asm()
    a.raw('.amdgcn_target "amdgcn-amd-amdhsa--gfx950"')
    a.raw(".text")
    name = "f_kernel"
    kernel_head(a, name)
    SP = opt.get("sp", "sc1")
    LP = opt.get("lp", "sc1")
    sWS, sA, sB, sC, sD = 28, 32, 36, 40, 44
    sWave, sXcd, sT, sRt, sH, sRot, sBud = 48, 49, 50, 51, 52, 53, 54
    sT0, sT1, sT2, sT3 = 55, 56, 57, 58
    s59, s60, s61, s62, s63 = 59, 60, 61, 62, 63
    l, vSt = 1, 2
    t0, t1, t2, t3, t4, t5, t6, t7 = 3, 4, 5, 6, 7, 8, 9, 10
    _lab = [0]
    def newlab(p):
        _lab[0] += 1
        return "L%s%d" % (p, _lab[0])

    def stamp(i):
        if not TRACE:
            return
        a("s_memrealtime s[98:99]")
        a("s_waitcnt lgkmcnt(0)")
        a("s_mov_b32 s%d, s98" % (64 + i))
        if i in (0, 31):
            a("s_memtime s[98:99]")
            a("s_waitcnt lgkmcnt(0)")
            a("s_sub_u32 s93, s98, s93")

    def trace_flush():
        if not TRACE:
            return
        a("s_waitcnt vmcnt(0) lgkmcnt(0)")
        stamp(31)
        a("s_getreg_b32 s94, hwreg(HW_REG_XCC_ID)")
        a("s_lshl_b32 s96, s2, 10")
        a("s_add_u32 s96, s96, 0x%x" % WS_T)
        a("v_lshrrev_b32 v253, 6, v0")
        a("v_lshlrev_b32 v253, 7, v253")
        for q in range(8):
            for i in range(4):
                a("v_mov_b32 v%d, s%d" % (248 + i, 64 + 4 * q + i))
            a("buffer_store_dwordx4 v[248:251], v253, %s, s96 offen offset:%d" % (sr(sWS, 4), 16 * q))
            a("s_nop 1")

    def budget(lab):
        a("s_sub_u32 s%d, s%d, 1" % (sBud, sBud))
        a("s_cmp_gt_i32 s%d, 0" % sBud)
        a("s_cbranch_scc1 %s" % lab)

    def min4(t, tm):
        a("v_min_u32 v%d, v%d, v%d" % (tm, t, t + 1))
        a("v_min3_u32 v%d, v%d, v%d, v%d" % (tm, tm, t + 2, t + 3))
        a("s_nop 0")
        a("v_readfirstlane_b32 s%d, v%d" % (sT3, tm))

    def lds_poll(vF, off, need, t, tm, sleep=0, pre=False):
        lab, done = newlab("p"), newlab("d")
        if pre:
            min4(t, tm)
            a("s_cmp_ge_u32 s%d, %d" % (sT3, need))
            a("s_cbranch_scc1 %s" % done)
        a.label(lab)
        a("ds_read_b128 %s, v%d offset:%d" % (vr(t, 4), vF, off))
        a("s_waitcnt lgkmcnt(0)")
        min4(t, tm)
        a("s_cmp_ge_u32 s%d, %d" % (sT3, need))
        a("s_cbranch_scc1 %s" % done)
        if sleep:
            a("s_sleep %d" % sleep)
        budget(lab)
        a.label(done)

    def glb_check(t, need, done):
        a("v_cmp_le_u32 vcc, %d, v%d" % (need, t))
        a("s_nop 1")
        a("s_cmp_eq_u64 vcc, exec")
        a("s_cbranch_scc1 %s" % done)

    def glb_poll(srd, vA, soff, need, t, sleep=2, pre=False, first=None):
        lab, done = newlab("g"), newlab("e")
        if pre:
            glb_check(t, need, done)
        a.label(lab)
        a("buffer_load_dword v%d, v%d, %s, %s offen sc1" % (t, vA, sr(srd, 4), soff))
        a("s_waitcnt vmcnt(0)")
        if first:
            first()
        glb_check(t, need, done)
        if sleep:
            a("s_sleep %d" % sleep)
        budget(lab)
        a.label(done)

    def mfma(d, x, y, c):
        a("v_mfma_f32_32x32x16_bf16 %s, %s, %s, %s" % (vr(d, 16), vr(x, 4), vr(y, 4), c))

    def dma(v, srd, soff, m0base, m0off):
        if m0base is None:
            a("s_mov_b32 m0, 0x%x" % m0off)
        else:
            a("s_add_u32 m0, s%d, 0x%x" % (m0base, m0off))
        a("s_nop 0")
        a("buffer_load_dwordx4 v%d, %s, s%d offen lds" % (v, sr(srd, 4), soff))

    a("s_cmp_ge_u32 s2, 256")
    a("s_cbranch_scc1 f_exit")
    a("s_load_dwordx8 s[4:11], s[0:1], 0")
    a("s_load_dwordx8 s[12:19], s[0:1], 32")
    a("s_load_dwordx4 s[20:23], s[0:1], 64")
    a("s_load_dwordx2 s[24:25], s[0:1], 80")
    if TRACE:
        for i in range(32):
            a("s_mov_b32 s%d, 0" % (64 + i))
    a("v_and_b32 v%d, 63, v0" % l)
    a("v_lshrrev_b32 v%d, 6, v0" % t0)
    a("s_and_b32 s%d, s2, 7" % sXcd)
    a("v_readfirstlane_b32 s%d, v%d" % (sWave, t0))
    a("s_lshr_b32 s%d, s2, 3" % sT)
    a("v_lshlrev_b32 v%d, 4, v%d" % (vSt, l))
    pm = opt.get("pm", 2)
    lb = {1: 0, 2: 1, 4: 2}[pm]
    a("s_and_b32 s%d, s%d, %d" % (sT0, sXcd, pm - 1))
    a("s_lshl_b32 s%d, s%d, %d" % (sT0, sT0, 4 - lb))
    a("s_and_b32 s%d, s%d, %d" % (sT1, sT, 16 // pm - 1))
    a("s_add_u32 s%d, s%d, s%d" % (sRt, sT0, sT1))
    a("s_lshr_b32 s%d, s%d, %d" % (sT0, sXcd, lb))
    a("s_lshl_b32 s%d, s%d, %d" % (sT0, sT0, lb + 1))
    a("s_lshr_b32 s%d, s%d, %d" % (sT1, sT, 4 - lb))
    a("s_add_u32 s%d, s%d, s%d" % (sH, sT0, sT1))
    ra, rb = opt.get("ra", 1), opt.get("rb", 1)
    a("s_mul_i32 s%d, s%d, %d" % (sT0, sRt, ra))
    a("s_mul_i32 s%d, s%d, %d" % (sT1, sH, rb))
    a("s_add_u32 s%d, s%d, s%d" % (sRot, sT0, sT1))
    a("s_mul_i32 s%d, s%d, 9363" % (sT0, sRot))
    a("s_lshr_b32 s%d, s%d, 16" % (sT0, sT0))
    a("s_mul_i32 s%d, s%d, 7" % (sT0, sT0))
    a("s_sub_u32 s%d, s%d, s%d" % (sRot, sRot, sT0))
    a("s_mov_b32 s%d, 0x%x" % (sBud, opt.get("budget", 100000)))
    a("s_cmp_ge_u32 s%d, 4" % sWave)
    a("s_cbranch_scc1 f_gemm")

    sQK, sG, sU, sG2 = sA, sB, sC, sD
    sL = sWave
    sOff, sLd = s59, s60
    vFl, vLw = 11, 12
    vQd, vG1g, vG1u = 13, 14, 15
    vG2 = [16, 17, 18]
    vGa = [19, 20]
    vGi = [21, 22]
    FB = 24
    vm = Cnt(a, "vmcnt", 63)
    a("v_lshrrev_b32 v%d, 2, v%d" % (t0, l))
    a("s_lshl_b32 s%d, s%d, 4" % (sT0, sL))
    a("v_add_u32 v%d, s%d, v%d" % (t0, sT0, t0))
    a("v_mul_u32_u24 v%d, 2688, v%d" % (t0, t0))
    a("v_and_b32 v%d, 3, v%d" % (t1, l))
    a("v_lshl_add_u32 v%d, v%d, 4, v%d" % (t0, t1, t0))
    a("s_mul_i32 s%d, s%d, 56" % (sT1, sH))
    a("v_add_u32 v%d, s%d, v%d" % (vQd, sT1, t0))
    a("s_mul_i32 s%d, s%d, %d" % (sOff, sRot, 64 * 2688))
    a("s_lshl_b32 s%d, s%d, 10" % (sLd, sL))
    a("v_lshrrev_b32 v%d, 4, v%d" % (t0, l))
    a("v_and_b32 v%d, 15, v%d" % (t1, l))
    a("v_add_u32 v%d, s%d, v%d" % (t1, sT0, t1))
    for b in range(2):
        a("v_add_u32 v%d, s%d, v%d" % (t2, sRot, t0))
        if b:
            a("v_add_u32 v%d, 4, v%d" % (t2, t2))
        a("v_subrev_u32 v%d, 7, v%d" % (t3, t2))
        a("v_min_u32 v%d, v%d, v%d" % (t2, t2, t3))
        a("v_lshl_add_u32 v%d, v%d, 6, v%d" % (t2, t2, t1))
        a("v_lshlrev_b32 v%d, 1, v%d" % (vGa[b], t2))
    a("v_mul_u32_u24 v%d, 12288, v%d" % (t2, t0))
    a("v_lshl_add_u32 v%d, v%d, 6, v%d" % (t2, t1, t2))
    a("v_add_u32 v%d, 0x%x, v%d" % (vGi[0], L_WQ + 8192 + 56, t2))
    a("v_add_u32 v%d, 0x%x, v%d" % (vGi[1], 4 * 12288, vGi[0]))
    a("v_mov_b32 v%d, 0x%x" % (vFl, L_FLG))
    a("s_lshl_b32 s%d, s%d, 2" % (sT0, sL))
    a("v_add_u32 v%d, s%d, v%d" % (vLw, sT0, vFl))
    a("v_lshl_add_u32 v%d, v%d, 2, v%d" % (t0, l, vFl))
    a("v_mov_b32 v%d, 0" % t1)
    a("s_cmp_lg_u32 s%d, 0" % sL)
    lz = newlab("z")
    a("s_cbranch_scc1 %s" % lz)
    a("ds_write_b32 v%d, v%d" % (t0, t1))
    a.label(lz)
    a("s_waitcnt lgkmcnt(0)")
    stamp(0)
    make_srd(a, sQK, 6, 7, 448 * 2688)
    make_srd(a, sG2, 18, 19, 896)
    make_srd(a, sWS, 24, 25, WS_SIZE)
    lz = newlab("z")
    a("s_or_b32 s%d, s2, s%d" % (sT0, sL))
    a("s_cmp_lg_u32 s%d, 0" % sT0)
    a("s_cbranch_scc1 %s" % lz)
    for i in range(4):
        a("v_mov_b32 v%d, 0" % (FB + i))
    a("s_mov_b32 s%d, 0x%x" % (sT0, WS_F))
    for i in range(16):
        a("buffer_store_dwordx4 %s, v%d, %s, s%d offen offset:%d sc1" % (vr(FB, 4), vSt, sr(sWS, 4), sT0, (i % 4) * 1024))
        if i % 4 == 3:
            a("s_add_u32 s%d, s%d, 4096" % (sT0, sT0))
    a.label(lz)
    BARC = opt.get("barc", 1)
    NI = opt.get("ni", 7)
    for b in range(2):
        a("buffer_load_ushort v%d, v%d, %s, 0 offen" % (vGa[b], vGa[b], sr(sG2, 4)))
        vm.issue("ga")
    def wq_issue(c):
        for m, mo in enumerate((896, 1792, 0)):
            a("s_add_u32 s%d, s%d, %d" % (sT0, sOff, mo))
            dma(vQd, sQK, sT0, sLd, L_WQ + c * 12288 + m * 4096)
            vm.issue(("w", c))
        a("s_add_u32 s%d, s%d, %d" % (sOff, sOff, 64 * 2688))
        a("s_cmp_eq_u32 s%d, %d" % (sOff, 448 * 2688))
        a("s_cselect_b32 s%d, 0, s%d" % (sOff, sOff))
    for c in range(NI):
        wq_issue(c)
        if c == BARC:
            a("s_barrier")
            lz = newlab("z")
            a("s_or_b32 s%d, s2, s%d" % (sT0, sL))
            a("s_cmp_lg_u32 s%d, 0" % sT0)
            a("s_cbranch_scc1 %s" % lz)
            make_srd(a, sG, 22, 23, 256)
            a("v_mov_b32 v%d, 1" % t0)
            a("v_mov_b32 v%d, 0" % t1)
            a("s_waitcnt vmcnt(%d)" % len(vm.q))
            a("buffer_store_dword v%d, v%d, %s, 0 offen sc1" % (t0, t1, sr(sG, 4)))
            a.label(lz)
    stamp(1)
    make_srd(a, sG, 12, 13, 448 * 3584)
    make_srd(a, sU, 14, 15, 448 * 3584)
    a("s_cmp_lt_u32 s%d, 2" % sL)
    a("s_cselect_b32 s%d, s12, s14" % sT2)
    a("s_cselect_b32 s%d, s13, s15" % sT3)
    a("v_lshrrev_b32 v%d, 3, v%d" % (t0, l))
    a("v_bfe_u32 v%d, v%d, 4, 1" % (t1, l))
    a("v_lshlrev_b32 v%d, 1, v%d" % (t1, t1))
    a("v_and_b32 v%d, 7, v%d" % (t2, l))
    a("v_xor_b32 v%d, v%d, v%d" % (t2, t2, t1))
    a("s_lshl_b32 s%d, s%d, 4" % (sT0, sL))
    a("v_add_u32 v%d, s%d, v%d" % (t0, sT0, t0))
    a("v_mul_u32_u24 v%d, 3584, v%d" % (t0, t0))
    a("v_lshl_add_u32 v%d, v%d, 4, v%d" % (t0, t2, t0))
    a("s_lshl_b32 s%d, s%d, 7" % (sT0, sH))
    a("v_add_u32 v%d, s%d, v%d" % (vG1g, sT0, t0))
    a("v_xor_b32 v%d, 64, v%d" % (vG1u, vG1g))
    a("s_and_b32 s%d, s%d, 1" % (sT0, sL))
    a("s_mul_i32 s%d, s%d, %d" % (sT0, sT0, 32 * 3584))
    a("s_mul_i32 s%d, s%d, 96" % (sT1, sH))
    a("s_add_u32 s%d, s%d, s%d" % (sT0, sT0, sT1))
    a("s_add_u32 s%d, s%d, 2048" % (sT0, sT0))
    for p in range(3):
        a("v_add_u32 v%d, %d, v%d" % (t0, 64 * p, l))
        a("v_mul_u32_u24 v%d, 10923, v%d" % (t1, t0))
        a("v_lshrrev_b32 v%d, 16, v%d" % (t1, t1))
        a("v_mul_u32_u24 v%d, 6, v%d" % (t2, t1))
        a("v_sub_u32 v%d, v%d, v%d" % (t2, t0, t2))
        a("v_mul_u32_u24 v%d, 3584, v%d" % (t1, t1))
        a("v_lshl_add_u32 v%d, v%d, 4, v%d" % (t1, t2, t1))
        a("v_add_u32 v%d, s%d, v%d" % (vG2[p], sT0, t1))
    sL1, sL2 = s61, s62
    a("s_lshl_b32 s%d, s%d, 11" % (sL1, sL))
    a("s_lshr_b32 s%d, s%d, 1" % (sT0, sL))
    a("s_mul_i32 s%d, s%d, 6272" % (sL2, sT0))
    a("s_and_b32 s%d, s%d, 1" % (sT0, sL))
    a("s_mul_i32 s%d, s%d, 3072" % (sT0, sT0))
    a("s_add_u32 s%d, s%d, s%d" % (sL2, sL2, sT0))
    sOfG = s63
    a("s_mul_i32 s%d, s%d, %d" % (sOfG, sRot, 64 * 3584))

    def signal(n):
        a("v_mov_b32 v%d, %d" % (t7, n))
        a("ds_write_b32 v%d, v%d offset:%d" % (vLw, t7, F_LAND))

    def gu_issue(i):
        base, dep = GU_PLACE[i]
        if i < 7:
            for m, (v, srd) in enumerate(((vG1g, sG), (vG1u, sU))):
                for q in range(2):
                    if q:
                        a("s_add_u32 s%d, s%d, %d" % (sT0, sOfG, 8 * 3584))
                    dma(v, srd, sT0 if q else sOfG, sL1, base + m * 8192 + q * 1024)
                    vm.issue(("w", 7 + i))
        else:
            for p in range(3):
                dma(vG2[p], sG2, sOfG, sL2, base + p * 1024)
                vm.issue(("w", 7 + i))
        a("s_add_u32 s%d, s%d, %d" % (sOfG, sOfG, 64 * 3584))
        a("s_cmp_eq_u32 s%d, %d" % (sOfG, 448 * 3584))
        a("s_cselect_b32 s%d, 0, s%d" % (sOfG, sOfG))

    LSL = opt.get("lsleep", 1)
    LAG = opt.get("lag", 1)
    DBC = opt.get("dbc", 3)
    vDb, vZ = 29, 30
    gi = 0
    def gu_upto(P):
        nonlocal gi
        if gi < 10 and GU_PLACE[gi][1] <= P:
            lds_poll(vFl, F_P, P, FB, FB + 4, sleep=LSL)
        while gi < 10 and GU_PLACE[gi][1] <= P:
            gu_issue(gi); gi += 1
    for c in range(7):
        vm.wait(("w", c))
        if c == 0:
            make_srd(a, sG2, sT2, sT3, 448 * 3584)
        em = 0xffff << (16 * (c % 4))
        a("s_mov_b32 exec_lo, 0x%x" % (em & 0xffffffff))
        a("s_mov_b32 exec_hi, 0x%x" % (em >> 32))
        a("ds_write_b16 v%d, v%d" % (vGi[c // 4], vGa[c // 4]))
        a("s_mov_b64 exec, -1")
        signal(c + 1)
        if c + NI < 7:
            wq_issue(c + NI)
        if c == DBC:
            assert c + NI >= 6
            make_srd(a, sQK, 22, 23, 256)
            a("v_mov_b32 v%d, 0" % vZ)
            a("buffer_load_dword v%d, v%d, %s, 0 offen sc1" % (vDb, vZ, sr(sQK, 4)))
            vm.issue("dbg")
        if c == 6:
            vm.wait("dbg")
            glb_poll(sQK, vZ, "0", 1, vDb, pre=True)
            a("v_mov_b32 v%d, 1" % t7)
            a("ds_write_b32 v%d, v%d offset:%d" % (vLw, t7, F_DBG))
            stamp(2)
        gu_upto(c + 1 - LAG)
    si = 0
    def sig_upto(i):
        nonlocal si
        while si < i:
            vm.wait(("w", 7 + si))
            signal(8 + si)
            si += 1
    for P in range(8 - LAG, 8):
        sig_upto(min(gi, P - 4))
        gu_upto(P)
    assert gi == 10
    stamp(3)
    sig_upto(7)
    stamp(4)
    lds_poll(vFl, F_QRDY, 1, FB, FB + 4, sleep=1)
    stamp(5)

    KVD = opt.get("kvd", 4)
    KV0 = opt.get("kv0", 2)
    Q, O, S, PK, KB = 32, 64, 128, 160, 176
    VB = KB + 8 * KVD
    MX = [13, 14, 15, 16]
    vRd = [17, 18, 19]
    vWr, vF, vFw, vGt, vFK = 20, 21, 22, 23, 29
    sKVb, sKo, sKV, sPass, sKo0, sCnt, sOo = s59, s60, s61, s62, s63, 26, 27
    a("v_and_b32 v%d, 15, v%d" % (t0, l))
    a("s_lshl_b32 s%d, s%d, 8" % (sT0, sH))
    a("s_lshl_b32 s%d, s%d, 6" % (sT1, sWave))
    a("s_add_u32 s%d, s%d, s%d" % (sT0, sT0, sT1))
    a("s_add_u32 s%d, s%d, 0x%x" % (sT0, sT0, WS_F))
    a("v_lshl_add_u32 v%d, v%d, 2, s%d" % (vFK, t0, sT0))
    a("s_lshl_b32 s%d, s%d, 18" % (sT2, sH))
    a("s_add_u32 s%d, s%d, 0x%x" % (sT2, sT2, WS_KV))
    a("s_lshl_b32 s%d, s%d, 16" % (sT3, sWave))
    a("s_add_u32 s%d, s%d, s%d" % (sKVb, sT2, sT3))
    a("s_and_b32 s%d, s%d, %d" % (sKo0, sRt, 16 // pm - 1))
    a("s_lshl_b32 s%d, s%d, %d" % (sKo0, sKo0, 12 + lb))
    a("s_mov_b32 s%d, 0" % sPass)
    a("s_lshl_b32 s%d, s%d, 2" % (sT0, sRt))
    a("s_add_u32 s%d, s%d, s%d" % (sT0, sT0, sWave))
    a("s_lshl_b32 s%d, s%d, 4" % (sT0, sT0))
    a("s_add_u32 s%d, s%d, s%d" % (sT0, sT0, sH))
    a("s_lshl_b32 s%d, s%d, 11" % (sOo, sT0))
    a("s_add_u32 s%d, s%d, 0x%x" % (sOo, sOo, WS_O))
    a("s_lshl_b32 s%d, s%d, 2" % (sCnt, sT0))
    a("s_add_u32 s%d, s%d, 0x%x" % (sCnt, sCnt, WS_F + 8192))
    vFO = 30
    a("v_mov_b32 v%d, s%d" % (vFO, sCnt))
    a("v_add_u32 v%d, %d, v%d" % (vF, F_ATT, vFl))
    a("v_add_u32 v%d, %d, v%d" % (vFw, F_ATT, vLw))
    a("s_mul_i32 s%d, s%d, 12288" % (sT0, sWave))
    a("s_add_u32 s%d, s%d, 0x%x" % (sT0, sT0, L_ATT))
    a("v_add_u32 v%d, s%d, v%d" % (vWr, sT0, vSt))
    for k in range(1, 4):
        a("s_sub_u32 s%d, s%d, %d" % (sT0, sWave, k))
        a("s_and_b32 s%d, s%d, 3" % (sT0, sT0))
        a("s_mul_i32 s%d, s%d, 12288" % (sT0, sT0))
        a("s_add_u32 s%d, s%d, %d" % (sT0, sT0, (k - 1) * 4096 + L_ATT))
        a("v_add_u32 v%d, s%d, v%d" % (vRd[k - 1], sT0, vSt))
    for qt in range(4):
        a("s_add_u32 s%d, s%d, %d" % (sT0, sWave, qt))
        a("s_and_b32 s%d, s%d, 3" % (sT0, sT0))
        a("s_lshl_b32 s%d, s%d, 11" % (sT0, sT0))
        a("s_add_u32 s%d, s%d, 0x%x" % (sT0, sT0, L_Q))
        a("v_add_u32 v%d, s%d, v%d" % (t0, sT0, vSt))
        for f in range(2):
            a("ds_read_b128 %s, v%d offset:%d" % (vr(Q + 8 * qt + 4 * f, 4), t0, f * 1024))
    a("v_and_b32 v%d, 31, v%d" % (t0, l))
    a("s_lshl_b32 s%d, s%d, 7" % (sT0, sWave))
    a("s_add_u32 s%d, s%d, 0x%x" % (sT0, sT0, L_G))
    a("v_lshl_add_u32 v%d, v%d, 2, s%d" % (t0, t0, sT0))
    a("ds_read_b32 v%d, v%d" % (vGt, t0))
    a("v_mov_b32 v%d, 1" % t1)
    a("ds_write_b32 v%d, v%d offset:%d" % (vLw, t1, F_QRD))
    sig_upto(10)
    stamp(6)
    glb_poll(sWS, vFK, "0", 1, t0, sleep=opt.get("ksleep", 2))
    vm.clear()
    stamp(7)
    if opt.get("aprio", 0):
        a("s_setprio %d" % opt["aprio"])

    def ld(dst, soff, imm):
        a("buffer_load_dwordx4 %s, v%d, %s, s%d offen offset:%d %s" % (vr(dst, 4), vSt, sr(sWS, 4), soff, imm, LP))
    def kvnext():
        a("s_add_u32 s%d, s%d, 4096" % (sKo, sKo))
        a("s_and_b32 s%d, s%d, 0xffff" % (sKo, sKo))
        a("s_add_u32 s%d, s%d, s%d" % (sKV, sKVb, sKo))
    def ldgroup(n):
        b = n % KVD
        ld(KB + 8 * b, sKV, 0); vm.issue(("K", n))
        ld(KB + 8 * b + 4, sKV, 1024); vm.issue(("K", n))
        ld(VB + 8 * b, sKV, 2048); vm.issue(("V", n))
        ld(VB + 8 * b + 4, sKV, 3072); vm.issue(("V", n))
        kvnext()

    a.label("f_attn_main")
    a("s_mov_b32 s%d, s%d" % (sKo, sKo0))
    a("s_add_u32 s%d, s%d, s%d" % (sKV, sKVb, sKo))
    for n in range(KV0):
        ldgroup(n)
    a("s_waitcnt lgkmcnt(0)")

    def MS(u):
        kt, qt = u // 4, u % 4
        d = S + 16 * (u % 2)
        kb = KB + 8 * (kt % KVD)
        return ["v_mfma_f32_32x32x16_bf16 %s, %s, %s, 0" % (vr(d, 16), vr(kb, 4), vr(Q + 8 * qt, 4)),
                "v_mfma_f32_32x32x16_bf16 %s, %s, %s, %s" % (vr(d, 16), vr(kb + 4, 4), vr(Q + 8 * qt + 4, 4), vr(d, 16))]
    def MP(u):
        kt, qt = u // 4, u % 4
        d = O + 16 * qt
        vb = VB + 8 * (kt % KVD)
        p = PK + 8 * (u % 2)
        return ["v_mfma_f32_32x32x16_bf16 %s, %s, %s, %s" % (vr(d, 16), vr(vb, 4), vr(p, 4), "0" if kt == 0 else vr(d, 16)),
                "v_mfma_f32_32x32x16_bf16 %s, %s, %s, %s" % (vr(d, 16), vr(vb + 4, 4), vr(p + 4, 4), vr(d, 16))]
    def EX(u):
        d = S + 16 * (u % 2)
        return ["v_exp_f32 v%d, v%d" % (d + i, d + i) for i in range(16)]
    def CV(u):
        d = S + 16 * (u % 2)
        p = PK + 8 * (u % 2)
        return ["v_cvt_pk_bf16_f32 v%d, v%d, v%d" % (p + i, d + 2 * i, d + 2 * i + 1) for i in range(8)]

    NU = 64
    vm.wait(("K", 0))
    stamp(8)
    for x in MS(0):
        a(x)
    a("s_nop 7")
    a("s_nop 3")
    for u in range(NU + 1):
        ms = MS(u + 1) if u + 1 < NU else []
        mp = MP(u - 1) if u >= 1 else []
        ex = EX(u) if u < NU else []
        cv = CV(u) if u < NU else []
        if ms and (u + 1) % 4 == 0:
            vm.wait(("K", (u + 1) // 4))
        if mp and (u - 1) % 4 == 0:
            vm.wait(("V", (u - 1) // 4))
        pend = None
        if u % 4 == 1 and u >= 5 and (u - 5) // 4 + KVD < 16:
            pend = (u - 5) // 4 + KVD
        elif u < KVD - KV0:
            pend = KV0 + u
        if u == NU:
            a("s_nop 1")
            for x in mp:
                a(x)
            break
        mm = ms + mp
        seq = mm[0:1] + ex[0:3] + mm[1:2] + ex[3:6] + mm[2:3] + ex[6:9] + mm[3:4] + ex[9:16] + cv
        for x in seq:
            a(x)
        if pend is not None:
            ldgroup(pend)
        if u == 32:
            stamp(9)
    stamp(10)
    lds_poll(vFl, F_P, 24, S, S + 4)
    for k in (1, 2):
        for quad in range(4):
            a("ds_write_b128 v%d, %s offset:%d" % (vWr, vr(O + 16 * k + 4 * quad, 4), (k - 1) * 4096 + quad * 1024))
    a("v_mov_b32 v%d, %s" % (t1, f32hex(2.0 ** 28)))
    a("v_add_f32 v%d, v%d, v%d" % (t2, O + 12, O + 16 + 12))
    a("v_add_f32 v%d, v%d, v%d" % (t2, t2, O + 32 + 12))
    a("s_nop 1")
    for quad in range(4):
        a("ds_write_b128 v%d, %s offset:%d" % (vWr, vr(O + 48 + 4 * quad, 4), 2 * 4096 + quad * 1024))
    a("v_add_f32 v%d, v%d, v%d" % (t2, t2, O + 48 + 12))
    a("v_cmp_nle_f32 vcc, v%d, v%d" % (t2, t1))
    a("s_nop 1")
    a("s_cmp_lg_u32 vcc_hi, 0")
    a("s_cselect_b32 s%d, 2, 1" % sT0)
    a("v_mov_b32 v%d, s%d" % (t0, sT0))
    a("ds_write_b32 v%d, v%d" % (vFw, t0))
    lds_poll(vF, 0, 1, S, S + 4)
    stamp(11)
    R = 144
    for k in range(1, 4):
        for quad in range(4):
            a("ds_read_b128 %s, v%d offset:%d" % (vr(R + 16 * (k - 1) + 4 * quad, 4), vRd[k - 1], quad * 1024))
    a("v_or3_b32 v%d, v%d, v%d, v%d" % (t0, S, S + 1, S + 2))
    a("v_or_b32 v%d, v%d, v%d" % (t0, t0, S + 3))
    a("s_nop 0")
    a("v_readfirstlane_b32 s%d, v%d" % (sT0, t0))
    a("s_andn2_b32 s%d, s%d, s%d" % (sT0, sT0, sPass))
    a("s_bitcmp1_b32 s%d, 1" % sT0)
    a("s_cbranch_scc1 f_fallback")
    for k in range(3):
        a("s_waitcnt lgkmcnt(%d)" % (8 - 4 * k))
        for i in range(16):
            a("v_add_f32 v%d, v%d, v%d" % (O + i, O + i, R + 16 * k + i))
    a("v_mov_b32 v%d, v%d" % (t0, O + 12))
    a("v_mov_b32 v%d, v%d" % (t1, O + 12))
    a("s_nop 1")
    a("v_permlane32_swap_b32 v%d, v%d" % (t0, t1))
    a("s_nop 1")
    a("v_rcp_f32 v%d, v%d" % (t1, t1))
    a("s_nop 0")
    a("v_mul_f32 v%d, v%d, v%d" % (t1, t1, vGt))
    for i in range(16):
        a("v_mul_f32 v%d, v%d, v%d" % (O + i, t1, O + i))
    for i in range(8):
        a("v_cvt_pk_bf16_f32 v%d, v%d, v%d" % (R + i, O + 2 * i, O + 2 * i + 1))
    a("s_mov_b32 exec_lo, 0")
    a("v_mov_b32 v%d, 0" % (R + 6))
    a("v_mov_b32 v%d, 0" % (R + 7))
    a("s_mov_b32 exec_lo, -1")
    for f in range(2):
        a("buffer_store_dwordx4 %s, v%d, %s, s%d offen offset:%d %s" % (vr(R + 4 * f, 4), vSt, sr(sWS, 4), sOo, f * 1024, SP))
    a("v_mov_b32 v%d, 1" % t0)
    stamp(12)
    a("s_waitcnt vmcnt(0)")
    a("s_mov_b64 exec, 1")
    a("buffer_store_dword v%d, v%d, %s, 0 offen sc1" % (t0, vFO, sr(sWS, 4)))
    a("s_mov_b64 exec, -1")
    stamp(13)
    trace_flush()
    a("s_endpgm")

    def set_shift(qt, m):
        a("v_cvt_pk_bf16_f32 v%d, v%d, v%d" % (t0, m, m))
        a("v_lshlrev_b32 v%d, 16, v%d" % (t0, t0))
        a("v_sub_f32 v%d, v%d, v%d" % (t1, m, t0))
        a("v_cvt_pk_bf16_f32 v%d, v%d, v%d" % (t0, t1, t1))
        a("v_lshlrev_b32 v%d, 16, v%d" % (t0, t0))
        a("v_sub_f32 v%d, v%d, v%d" % (t2, t1, t0))
        a("s_mov_b32 exec_lo, 0")
        a("v_cvt_pk_bf16_f32 v%d, -v%d, -v%d" % (qt + 6, m, t1))
        a("v_cvt_pk_bf16_f32 v%d, -v%d, 0" % (qt + 7, t2))
        a("s_mov_b32 exec_lo, -1")

    def cross_half_max(m):
        a("v_mov_b32 v%d, v%d" % (t3, m))
        a("v_mov_b32 v%d, v%d" % (t4, m))
        a("s_nop 1")
        a("v_permlane32_swap_b32 v%d, v%d" % (t3, t4))
        a("s_nop 1")
        a("v_max_f32 v%d, v%d, v%d" % (m, t3, t4))

    a.label("f_fallback")
    a("s_waitcnt lgkmcnt(0)")
    a("s_mov_b32 s%d, 2" % sPass)
    a("s_mov_b32 exec_lo, 0")
    for qt in range(4):
        a("v_mov_b32 v%d, 0" % (Q + 8 * qt + 6))
        a("v_mov_b32 v%d, 0" % (Q + 8 * qt + 7))
    a("s_mov_b32 exec_lo, -1")
    for qt in range(4):
        a("v_mov_b32 v%d, 0xff800000" % MX[qt])
    a("s_mov_b32 s%d, s%d" % (sKV, sKVb))
    a("s_mov_b32 s%d, 0" % sCnt)
    a.label("f_fb_loop")
    ld(KB, sKV, 0)
    ld(KB + 4, sKV, 1024)
    a("s_add_u32 s%d, s%d, 4096" % (sKV, sKV))
    a("s_waitcnt vmcnt(0)")
    for qt in range(4):
        mfma(O + 16 * qt, KB, Q + 8 * qt, "0")
        mfma(O + 16 * qt, KB + 4, Q + 8 * qt + 4, vr(O + 16 * qt, 16))
    a("s_nop 7")
    a("s_nop 7")
    for qt in range(4):
        for i in range(0, 16, 2):
            a("v_max3_f32 v%d, v%d, v%d, v%d" % (MX[qt], MX[qt], O + 16 * qt + i, O + 16 * qt + i + 1))
    a("s_add_u32 s%d, s%d, 1" % (sCnt, sCnt))
    a("s_cmp_lt_u32 s%d, 16" % sCnt)
    a("s_cbranch_scc1 f_fb_loop")
    for qt in range(4):
        cross_half_max(MX[qt])
    a("v_mov_b32 v%d, 1" % t0)
    a("ds_write_b32 v%d, v%d offset:16" % (vFw, t0))
    lds_poll(vF, 16, 1, S, S + 4)
    vM = [24, 25, 26, 27]
    for qt in range(4):
        a("s_add_u32 s%d, s%d, %d" % (sT0, sWave, qt))
        a("s_and_b32 s%d, s%d, 3" % (sT0, sT0))
        a("s_lshl_b32 s%d, s%d, 8" % (sT0, sT0))
        a("s_add_u32 s%d, s%d, 0x%x" % (sT0, sT0, L_ATT))
        a("v_lshl_add_u32 v%d, v%d, 2, s%d" % (vM[qt], l, sT0))
    a("s_lshl_b32 s%d, s%d, 10" % (sT0, sWave))
    for qt in range(4):
        a("v_add_u32 v%d, s%d, v%d" % (t0, sT0, vM[qt]))
        a("ds_write_b32 v%d, v%d" % (t0, MX[qt]))
    a("v_mov_b32 v%d, 2" % t0)
    a("ds_write_b32 v%d, v%d offset:16" % (vFw, t0))
    lds_poll(vF, 16, 2, S, S + 4)
    for w in range(4):
        for qt in range(4):
            a("ds_read_b32 v%d, v%d offset:%d" % (S + 4 * w + qt, vM[qt], w * 1024))
    a("s_waitcnt lgkmcnt(0)")
    a("v_mov_b32 v%d, 3" % t0)
    a("ds_write_b32 v%d, v%d offset:16" % (vFw, t0))
    for qt in range(4):
        a("v_max3_f32 v%d, v%d, v%d, v%d" % (MX[qt], S + qt, S + 4 + qt, S + 8 + qt))
        a("v_max_f32 v%d, v%d, v%d" % (MX[qt], MX[qt], S + 12 + qt))
    for qt in range(4):
        set_shift(Q + 8 * qt, MX[qt])
    lds_poll(vF, 16, 3, S, S + 4)
    a("v_add_u32 v%d, 32, v%d" % (vF, vF))
    a("v_add_u32 v%d, 32, v%d" % (vFw, vFw))
    a("s_branch f_attn_main")

    a.label("f_gemm")
    sX, sDbg, sWD, sWO = sA, sB, sC, sD
    sGw = sWave
    a("s_sub_u32 s%d, s%d, 4" % (sGw, sGw))
    vFl, vPw, vC, vMask, vOr = 11, 12, 13, 14, 15
    vWA = list(range(16, 28))
    FB = 28
    vXA = [32, 33, 34, 35]
    vXD = [36, 37, 38, 39]
    WF, NW = 40, 8
    PD = opt.get("pd", 6)
    ACC, X = 72, 136
    sOffX, sXl, sRg, sKVo, sHo = s59, s60, s61, s62, s63
    vg = Cnt(a, "vmcnt", 63)
    lg = Cnt(a, "lgkmcnt", 15)
    a("s_lshl_b32 s%d, s%d, 2" % (sRg, sRt))
    a("s_add_u32 s%d, s%d, s%d" % (sRg, sRg, sGw))
    a("v_lshrrev_b32 v%d, 3, v%d" % (t0, l))
    a("v_and_b32 v%d, 7, v%d" % (t1, l))
    a("v_lshrrev_b32 v%d, 4, v%d" % (t2, l))
    a("v_xor_b32 v%d, v%d, v%d" % (t2, t2, t1))
    a("s_lshl_b32 s%d, s%d, 5" % (sT0, sRg))
    a("v_add_u32 v%d, s%d, v%d" % (t3, sT0, t0))
    a("v_mul_u32_u24 v%d, 896, v%d" % (t3, t3))
    a("v_lshl_add_u32 v%d, v%d, 4, v%d" % (vXD[0], t2, t3))
    a("v_xor_b32 v%d, 4, v%d" % (t2, t2))
    a("v_lshl_add_u32 v%d, v%d, 4, v%d" % (vXD[1], t2, t3))
    a("v_add_u32 v%d, %d, v%d" % (vXD[1], 8 * 896, vXD[1]))
    a("v_add_u32 v%d, %d, v%d" % (vXD[2], 16 * 896, vXD[0]))
    a("v_add_u32 v%d, %d, v%d" % (vXD[3], 16 * 896, vXD[1]))
    a("s_lshl_b32 s%d, s%d, 7" % (sOffX, sRot))
    a("s_lshl_b32 s%d, s%d, 12" % (sXl, sGw))
    a("s_waitcnt lgkmcnt(0)")
    stamp(0)
    make_srd(a, sX, 4, 5, 2048 * 896)
    XS = 4
    def xdma(c):
        for q in range(4):
            dma(vXD[q], sX, sOffX, sXl, L_X + (c % XS) * 16384 + q * 1024)
            vg.issue(("x", c))
        a("s_add_u32 s%d, s%d, 128" % (sOffX, sOffX))
        a("s_cmp_eq_u32 s%d, 896" % sOffX)
        a("s_cselect_b32 s%d, 0, s%d" % (sOffX, sOffX))
    if opt.get("gprio", 2):
        a("s_setprio %d" % opt.get("gprio", 2))
    for c in range(XS):
        xdma(c)
        if c == BARC:
            a("s_barrier")
    make_srd(a, sWS, 24, 25, WS_SIZE)
    stamp(1)
    vN, vHi = t4, t5
    a("v_and_b32 v%d, 31, v%d" % (vN, l))
    a("v_lshrrev_b32 v%d, 5, v%d" % (vHi, l))
    a("v_bfe_u32 v%d, v%d, 1, 3" % (t0, l))
    a("v_xor_b32 v%d, v%d, v%d" % (t0, t0, vHi))
    a("v_lshlrev_b32 v%d, 4, v%d" % (t0, t0))
    a("v_lshl_add_u32 v%d, v%d, 7, v%d" % (t0, vN, t0))
    a("v_add_u32 v%d, s%d, v%d" % (vXA[0], sXl, t0))
    for s in range(1, 4):
        a("v_xor_b32 v%d, %d, v%d" % (vXA[s], 32 * s, vXA[0]))
    a("v_cmp_gt_u32 vcc, 28, v%d" % vN)
    a("v_mov_b32 v%d, 0x3f803f80" % t0)
    a("s_nop 0")
    a("v_cndmask_b32 v%d, 0, -1, vcc" % vMask)
    a("v_cmp_eq_u32 vcc, 28, v%d" % vN)
    a("v_mov_b32 v%d, 0x%x" % (vFl, L_FLG))
    a("s_lshl_b32 s%d, s%d, 2" % (sT0, sGw))
    a("v_cndmask_b32 v%d, 0, v%d, vcc" % (vOr, t0))
    a("v_add_u32 v%d, s%d, v%d" % (vPw, sT0, vFl))
    vR8, vQ1, vC8 = t0, t1, t2
    def lane_parts():
        a("v_lshrrev_b32 v%d, 5, v%d" % (vHi, l))
        a("v_bfe_u32 v%d, v%d, 2, 2" % (t3, l))
        a("v_lshl_add_u32 v%d, v%d, 3, v%d" % (vR8, vHi, t3))
        a("v_bfe_u32 v%d, v%d, 4, 1" % (vQ1, l))
        a("v_and_b32 v%d, 3, v%d" % (vC8, l))
        a("v_lshlrev_b32 v%d, 3, v%d" % (vC8, vC8))
    lane_parts()
    a("v_lshl_add_u32 v%d, v%d, 6, v%d" % (t3, vR8, vC8))
    a("v_lshl_add_u32 v%d, v%d, 5, v%d" % (t3, vQ1, t3))
    a("v_add_u32 v%d, 0x10000, v%d" % (vWA[1], t3))
    a("v_add_u32 v%d, 0x20000, v%d" % (vWA[2], t3))
    a("s_lshl_b32 s%d, s%d, 6" % (sT0, sH))
    a("s_add_u32 s%d, s%d, s%d" % (sT0, sT0, sRg))
    a("s_lshl_b32 s%d, s%d, 12" % (sKVo, sT0))
    a("s_add_u32 s%d, s%d, 0x%x" % (sKVo, sKVo, WS_KV))

    def psignal(n):
        a("v_mov_b32 v%d, %d" % (t7, n))
        a("ds_write_b32 v%d, v%d offset:%d" % (vPw, t7, F_P))
        lg.issue("p")

    def xread(c):
        vg.wait(("x", c))
        for s in range(4):
            a("ds_read_b128 %s, v%d offset:%d" % (vr(X + 16 * c + 4 * s, 4), vXA[s], L_X + (c % XS) * 16384))
            lg.issue(("x", c))

    vDR = [19, 20, 21, 22, 23, 14]
    ACD = X + 48
    def hreg(q):
        if q < 4:
            return ACC + 48 + 4 * ((q + 1) % 4)
        if q < 7:
            return ACC + 16 * (q - 4)
        if q < 19:
            return X + 4 * (q - 7)
        r = q - 19
        return ACC + 16 * (r // 3) + 4 + 4 * (r % 3)

    def gemm_pass(ps, hooks={}):
        nt = (3, 4, 3, 4)[ps]
        per = 4 * nt
        N = 7 * per
        def addr(n):
            c, s, j = n // per, (n % per) // nt, n % nt
            if ps == 0:
                o = L_WQ + c * 12288 + j * 4096 + s * 1024
                return vWA[o >> 16], o & 0xffff, 256
            if ps == 1:
                o = GU_PLACE[c][0] + s * 2048
                return vWA[4 * (o >> 16) + j], o & 0xffff, 512
            if ps == 3:
                o = D_PLACE[c][0] + s * 3584 + j * 1024
                assert (o & 0xffff) + 512 < 65536
                return vDR[(o >> 16) + (3 if j == 3 else 0)], o & 0xffff, (256 if j == 3 else 512)
            o = GU_PLACE[7 + c][0] + s * 1536 + 32 * j
            assert (o & 0xffff) + 384 < 65536
            return vWA[o >> 16], o & 0xffff, 384
        def landflag(c):
            if ps == 3:
                return F_LAND2, 5 + c
            if ps == 2 and c >= 3:
                return F_LAND2, c - 2
            return F_LAND, 7 * ps + c + 1
        def wread(n):
            c = n // per
            if n % per == 0:
                fo, need = landflag(c)
                if n == 0 and ps == 0:
                    lds_poll(vFl, fo, need, FB, t6)
                else:
                    lg.wait("fl")
                    lds_poll(vFl, fo, need, FB, t6, pre=True)
                if TRACE and c in (0, 3, 6):
                    stamp((2, 6, 10, 24)[ps] + c // 3)
                    lg.clear()
            v, o, st = addr(n)
            d = WF + 4 * (n % NW)
            a("ds_read_b64_tr_b16 %s, v%d offset:%d" % (vr(d, 2), v, o)); lg.issue(("w", n))
            a("ds_read_b64_tr_b16 %s, v%d offset:%d" % (vr(d + 2, 2), v, o + st)); lg.issue(("w", n))
        def flread(c):
            a("ds_read_b128 %s, v%d offset:%d" % (vr(FB, 4), vFl, landflag(c)[0])); lg.issue("fl")
        if ps == 0:
            xread(0)
        else:
            flread(0)
        for n in range(PD):
            wread(n)
        for n in range(N):
            c, s, j = n // per, (n % per) // nt, n % nt
            if ps == 0 and n % per == 0:
                lg.wait(("x", c))
                if c + XS < 7:
                    xdma(c + XS)
            if ps == 3 and j == 0:
                vg.wait(("H", n // 4))
            lg.wait(("w", n))
            d = (ACD if ps == 3 else ACC) + 16 * j
            w, x = WF + 4 * (n % NW), (hreg(n // 4) if ps == 3 else X + 16 * c + 4 * s)
            cc = "0" if (c == 0 and s == 0) else vr(d, 16)
            if ps == 0 and j == 1:
                mfma(d, x, w, cc)
            else:
                mfma(d, w, x, cc)
            if n % per == per - 1:
                psignal(7 * ps + c + 1)
            if n % per == max(0, per - PD - 3) and c + 1 < 7:
                flread(c + 1)
            if ps == 0 and n % per == per - PD - 1 and c + 1 < 7:
                xread(c + 1)
            if n + PD < N:
                wread(n + PD)
            for f in hooks.get(n, []):
                f()

    FB2 = 32
    def pread():
        a("ds_read_b128 %s, v%d offset:%d" % (vr(FB2, 4), vFl, F_P)); lg.issue("pf")
    def pcheck(need):
        lg.wait("pf")
        lds_poll(vFl, F_P, need, FB2, t6, pre=True)
    gemm_pass(0)
    stamp(5)
    lg.clear()
    AK, AV, AQ, AS = ACC, ACC + 16, ACC + 32, ACC + 48
    a("s_nop 7")
    for i in range(8):
        a("v_cvt_pk_bf16_f32 v%d, v%d, v%d" % (AK + i, AK + 2 * i, AK + 2 * i + 1))
    a("s_mov_b32 exec_lo, 0")
    a("v_mov_b32 v%d, 0x3f803f80" % (AK + 6))
    a("v_mov_b32 v%d, 0x3f80" % (AK + 7))
    a("s_mov_b32 exec_lo, -1")
    def st4(src, soff, imm):
        a("buffer_store_dwordx4 %s, v%d, %s, s%d offen offset:%d %s" % (vr(src, 4), vSt, sr(sWS, 4), soff, imm, SP))
        vg.issue("st")
    st4(AK, sKVo, 0)
    st4(AK + 4, sKVo, 1024)
    for i in range(8):
        a("v_cvt_pk_bf16_f32 v%d, v%d, v%d" % (AV + i, AV + 2 * i, AV + 2 * i + 1))
    for i in range(8):
        a("v_and_or_b32 v%d, v%d, v%d, v%d" % (AV + i, AV + i, vMask, vOr))
    st4(AV, sKVo, 2048)
    st4(AV + 4, sKVo, 3072)
    a("v_mov_b32 v%d, v%d" % (t0, AQ + 12))
    a("v_mov_b32 v%d, v%d" % (t1, AQ + 12))
    for i in range(16):
        a("v_mul_f32 v%d, %s, v%d" % (AQ + i, f32hex(QSCALE), AQ + i))
    a("v_permlane32_swap_b32 v%d, v%d" % (t0, t1))
    for i in range(8):
        a("v_cvt_pk_bf16_f32 v%d, v%d, v%d" % (AQ + i, AQ + 2 * i, AQ + 2 * i + 1))
    a("s_mov_b32 exec_lo, 0")
    a("v_mov_b32 v%d, 0" % (AQ + 6))
    a("v_mov_b32 v%d, 0" % (AQ + 7))
    a("s_mov_b32 exec_lo, -1")
    a("v_mul_f32 v%d, %s, v%d" % (t1, f32hex(LOG2E), t1))
    a("s_nop 0")
    mfma(AS, AK, AQ, "0")
    mfma(AS, AK + 4, AQ + 4, vr(AS, 16))
    a("v_exp_f32 v%d, v%d" % (t2, t1))
    a("v_exp_f32 v%d, -v%d" % (t3, t1))
    a("v_and_b32 v%d, 31, v%d" % (t0, l))
    a("v_add_f32 v%d, 1.0, v%d" % (vC, t2))
    a("v_add_f32 v%d, 1.0, v%d" % (t3, t3))
    a("v_min_f32 v%d, %s, v%d" % (vC, f32hex(3.0e38), vC))
    a("v_rcp_f32 v%d, v%d" % (t3, t3))
    a("s_lshl_b32 s%d, s%d, 7" % (sT0, sGw))
    a("s_add_u32 s%d, s%d, 0x%x" % (sT0, sT0, L_G))
    a("v_lshl_add_u32 v%d, v%d, 2, s%d" % (t0, t0, sT0))
    a("ds_write_b32 v%d, v%d" % (t0, t3))
    a("s_nop 7")
    a("s_nop 3")
    M = t5
    a("v_max3_f32 v%d, v%d, v%d, v%d" % (M, AS, AS + 1, AS + 2))
    for i in range(3, 15, 2):
        a("v_max3_f32 v%d, v%d, v%d, v%d" % (M, M, AS + i, AS + i + 1))
    a("v_max_f32 v%d, v%d, v%d" % (M, M, AS + 15))
    cross_half_max(M)
    set_shift(AQ, M)
    a("s_lshl_b32 s%d, s%d, 11" % (sT0, sGw))
    a("s_add_u32 s%d, s%d, 0x%x" % (sT0, sT0, L_Q))
    a("v_add_u32 v%d, s%d, v%d" % (t0, sT0, vSt))
    a("v_mov_b32 v%d, 1" % t1)
    a("ds_write_b128 v%d, %s" % (t0, vr(AQ, 4)))
    a("ds_write_b128 v%d, %s offset:1024" % (t0, vr(AQ + 4, 4)))
    a("ds_write_b32 v%d, v%d offset:%d" % (vPw, t1, F_QRDY))
    a("s_lshl_b32 s%d, s%d, 6" % (sT0, sH))
    a("s_add_u32 s%d, s%d, s%d" % (sT0, sT0, sRg))
    a("s_lshl_b32 s%d, s%d, 2" % (sT0, sT0))
    a("s_add_u32 s%d, s%d, 0x%x" % (sKVo, sT0, WS_F))
    def flag_store(soff, val):
        a("v_mov_b32 v%d, %d" % (t6, val))
        a("v_mov_b32 v%d, 0" % t7)
        a("s_mov_b64 exec, 1")
        a("buffer_store_dword v%d, v%d, %s, s%d offen sc1" % (t6, t7, sr(sWS, 4), soff))
        a("s_mov_b64 exec, -1")
        vg.issue("fl")
    lane_parts()
    a("v_bfe_u32 v%d, v%d, 3, 1" % (t3, l))
    a("v_lshl_add_u32 v%d, v%d, 1, v%d" % (t3, vQ1, t3))
    a("v_lshl_add_u32 v%d, v%d, 5, v%d" % (t3, t3, vC8))
    a("v_lshl_add_u32 v%d, v%d, 7, v%d" % (t3, vR8, t3))
    a("v_lshl_add_u32 v%d, v%d, 13, v%d" % (vWA[0], vQ1, t3))
    for j in range(1, 4):
        a("v_xor_b32 v%d, %d, v%d" % (vWA[j], 32 * j, vWA[0]))
    for j in range(4):
        a("v_add_u32 v%d, 0x10000, v%d" % (vWA[4 + j], vWA[j]))
    a("s_mul_i32 s%d, s%d, 112" % (sHo, sRg))
    a("s_lshl_b32 s%d, s%d, 2" % (sT0, sH))
    a("s_add_u32 s%d, s%d, s%d" % (sHo, sHo, sT0))
    a("s_lshl_b32 s%d, s%d, 10" % (sHo, sHo))
    a("s_add_u32 s%d, s%d, 0x%x" % (sHo, sHo, WS_H))
    a("ds_read_b128 %s, v%d offset:%d" % (vr(FB, 4), vFl, F_DBG))
    gG2 = [36, 37, 38]
    vJ = 39
    sOffG, sL2g, sGs = s59, s60, sC
    a("s_cmp_lt_u32 s%d, 2" % sGw)
    a("s_cselect_b32 s%d, s12, s14" % sT2)
    a("s_cselect_b32 s%d, s13, s15" % sT3)
    make_srd(a, sGs, sT2, sT3, 448 * 3584)
    a("s_and_b32 s%d, s%d, 1" % (sT0, sGw))
    a("s_mul_i32 s%d, s%d, %d" % (sT0, sT0, 32 * 3584))
    a("s_mul_i32 s%d, s%d, 96" % (sT1, sH))
    a("s_add_u32 s%d, s%d, s%d" % (sT0, sT0, sT1))
    a("s_add_u32 s%d, s%d, 2048" % (sT0, sT0))
    for p in range(3):
        a("v_add_u32 v%d, %d, v%d" % (t0, 64 * p, l))
        a("v_mul_u32_u24 v%d, 10923, v%d" % (t1, t0))
        a("v_lshrrev_b32 v%d, 16, v%d" % (t1, t1))
        a("v_mul_u32_u24 v%d, 6, v%d" % (t2, t1))
        a("v_sub_u32 v%d, v%d, v%d" % (t2, t0, t2))
        a("v_mul_u32_u24 v%d, 3584, v%d" % (t1, t1))
        a("v_lshl_add_u32 v%d, v%d, 4, v%d" % (t1, t2, t1))
        a("v_add_u32 v%d, s%d, v%d" % (gG2[p], sT0, t1))
    a("s_lshr_b32 s%d, s%d, 1" % (sT0, sGw))
    a("s_mul_i32 s%d, s%d, 6272" % (sL2g, sT0))
    a("s_and_b32 s%d, s%d, 1" % (sT0, sGw))
    a("s_mul_i32 s%d, s%d, 3072" % (sT0, sT0))
    a("s_add_u32 s%d, s%d, s%d" % (sL2g, sL2g, sT0))
    a("s_add_u32 s%d, s%d, 3" % (sT0, sRot))
    a("s_sub_u32 s%d, s%d, 7" % (sT1, sT0))
    a("s_min_u32 s%d, s%d, s%d" % (sT0, sT0, sT1))
    a("s_mul_i32 s%d, s%d, %d" % (sOffG, sT0, 64 * 3584))
    vD64, vD32, vTab, vFH, vPo = 24, 25, 26, 27, 39
    sWD, sWO, sOut = sB, sD, sX
    sI112, sLdD, sJb, sJ = 4, 5, 6, 7
    make_srd(a, sWD, 16, 17, 1792 * 896)
    make_srd(a, sWO, 8, 9, 448 * 896)
    make_srd(a, sOut, 20, 21, 2048 * 896)
    a("s_and_b32 s%d, s%d, 3" % (sT3, sH))
    a("s_mul_i32 s%d, s%d, 224" % (sI112, sT3))
    a("s_andn2_b32 s%d, s%d, 3" % (sJb, sH))
    a("s_lshr_b32 s%d, s%d, 2" % (sJ, sH))
    a("s_mul_i32 s%d, s%d, 3584" % (sLdD, sGw))
    a("v_lshrrev_b32 v%d, 2, v%d" % (t0, l))
    a("v_and_b32 v%d, 3, v%d" % (t1, l))
    a("v_mul_u32_u24 v%d, 896, v%d" % (t0, t0))
    a("v_lshl_add_u32 v%d, v%d, 4, v%d" % (t0, t1, t0))
    a("v_add_u32 v%d, s%d, v%d" % (vD64, sI112, t0))
    a("v_lshrrev_b32 v%d, 1, v%d" % (t0, l))
    a("v_and_b32 v%d, 1, v%d" % (t1, l))
    a("v_mul_u32_u24 v%d, 896, v%d" % (t0, t0))
    a("v_lshl_add_u32 v%d, v%d, 4, v%d" % (t0, t1, t0))
    a("v_add_u32 v%d, s%d, v%d" % (t0, sI112, t0))
    a("v_add_u32 v%d, 192, v%d" % (vD32, t0))
    a("v_and_b32 v%d, 31, v%d" % (t0, l))
    a("v_subrev_u32 v%d, 3, v%d" % (t1, t0))
    a("v_cmp_gt_u32 vcc, 4, v%d" % t0)
    a("v_subrev_u32 v%d, 4, v%d" % (t2, t0))
    a("v_subrev_u32 v%d, 16, v%d" % (t3, t0))
    a("v_cndmask_b32 v%d, v%d, v%d, vcc" % (t1, t1, t0))
    a("v_cmp_gt_u32 vcc, 7, v%d" % t0)
    a("v_lshrrev_b32 v%d, 2, v%d" % (t4, t1))
    a("v_and_b32 v%d, 3, v%d" % (t1, t1))
    a("v_cndmask_b32 v%d, v%d, v%d, vcc" % (t2, t3, t2))
    a("v_and_b32 v%d, 15, v%d" % (t2, t2))
    a("v_add_u32 v%d, s%d, v%d" % (t4, sT3, t4))
    a("v_and_b32 v%d, 3, v%d" % (t4, t4))
    a("v_add_u32 v%d, s%d, v%d" % (t4, sJb, t4))
    a("v_lshl_add_u32 v%d, v%d, 2, v%d" % (t1, t4, t1))
    a("v_mul_u32_u24 v%d, 43, v%d" % (t3, t2))
    a("v_lshrrev_b32 v%d, 7, v%d" % (t3, t3))
    a("v_mul_u32_u24 v%d, 3, v%d" % (t4, t3))
    a("v_sub_u32 v%d, v%d, v%d" % (t2, t2, t4))
    a("v_add_u32 v%d, s%d, v%d" % (t3, sT3, t3))
    a("v_and_b32 v%d, 3, v%d" % (t3, t3))
    a("v_add_u32 v%d, s%d, v%d" % (t3, sJb, t3))
    a("v_mul_u32_u24 v%d, 3, v%d" % (t3, t3))
    a("v_add3_u32 v%d, v%d, v%d, 64" % (t2, t3, t2))
    a("v_subrev_u32 v%d, 4, v%d" % (t3, t0))
    a("v_cmp_gt_u32 vcc, 3, v%d" % t3)
    a("s_nop 1")
    a("v_cndmask_b32 v%d, v%d, v%d, vcc" % (t1, t1, t2))
    a("v_cmp_lt_u32 vcc, 18, v%d" % t0)
    a("s_nop 1")
    a("v_cndmask_b32 v%d, v%d, v%d, vcc" % (t1, t1, t2))
    a("v_mul_u32_u24 v%d, %d, v%d" % (vTab, 16 * 896, t1))
    a("s_lshl_b32 s%d, s%d, 4" % (sT0, sRg))
    a("s_add_u32 s%d, s%d, s%d" % (sT0, sT0, sJb))
    a("s_lshl_b32 s%d, s%d, 2" % (sT0, sT0))
    a("s_add_u32 s%d, s%d, 0x%x" % (sT0, sT0, WS_F + 4096))
    a("v_and_b32 v%d, 3, v%d" % (t0, l))
    a("v_lshl_add_u32 v%d, v%d, 2, s%d" % (vFH, t0, sT0))
    stamp(14)
    a("s_waitcnt lgkmcnt(0)")
    lds_poll(vFl, F_DBG, 1, FB, t6, pre=True)
    vg.wait("st")
    flag_store(sKVo, 1)
    stamp(15)
    def self_issue(i):
        def f():
            pcheck(GU_PLACE[i][1])
            for p in range(3):
                dma(gG2[p], sGs, sOffG, sL2g, GU_PLACE[i][0] + p * 1024)
                vg.issue(("g", i - 9))
            a("s_add_u32 s%d, s%d, %d" % (sOffG, sOffG, 64 * 3584))
            a("s_cmp_eq_u32 s%d, %d" % (sOffG, 448 * 3584))
            a("s_cselect_b32 s%d, 0, s%d" % (sOffG, sOffG))
        return f
    def d_issue(c):
        def f():
            a("s_add_u32 s%d, s%d, %d" % (sT1, sGw, 4 * c))
            a("v_readlane_b32 s%d, v%d, s%d" % (sT0, vTab, sT1))
            pcheck(D_PLACE[c][1])
            for t in range(3):
                if t:
                    a("s_add_u32 s%d, s%d, %d" % (sT1, sT0, 64 * t))
                dma(vD64, sWD, sT1 if t else sT0, sLdD, D_PLACE[c][0] + t * 1024)
                vg.issue(("g", 5 + c))
            a("s_mov_b32 exec_hi, 0")
            dma(vD32, sWD, sT0, sLdD, D_PLACE[c][0] + 3072)
            vg.issue(("g", 5 + c))
            a("s_mov_b32 exec_hi, -1")
        return f
    def sig2(n):
        def f():
            vg.wait(("g", n))
            a("v_mov_b32 v%d, %d" % (t7, n))
            a("ds_write_b32 v%d, v%d offset:%d" % (vPw, t7, F_LAND2))
            lg.issue("p")
        return f
    def addhook(hk, n, f):
        hk.setdefault(n, []).append(f)
    hk = {}
    SLO = opt.get("slo", 8)
    for i in range(10, 14):
        n = 16 * (i - 9) + SLO
        addhook(hk, n - 3, pread)
        addhook(hk, n, self_issue(i))
    for c in range(2):
        n = 16 * (5 + c) + SLO
        addhook(hk, n - 3, pread)
        addhook(hk, n, d_issue(c))
    gemm_pass(1, hk)
    stamp(9)
    lg.clear()
    sig2(2)()

    def glu(nt):
        for j in ((3, 0, 1, 2) if nt == 4 else range(nt)):
            g = [ACC + 16 * j + i for i in range(8)]
            u = [ACC + 16 * j + 8 + i for i in range(8)]
            dst = hreg(j) if nt == 4 else hreg(4 + j)
            for i in range(8):
                a("v_mul_f32 v%d, %s, v%d" % (g[i], f32hex(-LOG2E), g[i]))
            for i in range(8):
                a("v_exp_f32 v%d, v%d" % (g[i], g[i]))
            for i in range(8):
                a("v_fma_f32 v%d, v%d, v%d, v%d" % (g[i], g[i], vC, vC))
            for i in range(8):
                a("v_rcp_f32 v%d, v%d" % (g[i], g[i]))
            for i in range(8):
                a("v_mul_f32 v%d, v%d, v%d" % (u[i], g[i], u[i]))
            for i in range(4):
                a("v_cvt_pk_bf16_f32 v%d, v%d, v%d" % (dst + i, u[2 * i], u[2 * i + 1]))
            st4(dst, sHo, j * 1024)

    sFH = sKVo
    a("s_lshl_b32 s%d, s%d, 4" % (sT0, sRg))
    a("s_add_u32 s%d, s%d, s%d" % (sT0, sT0, sH))
    a("s_lshl_b32 s%d, s%d, 2" % (sT0, sT0))
    a("s_add_u32 s%d, s%d, 0x%x" % (sFH, sT0, WS_F + 4096))
    a("s_nop 4")
    glu(4)
    sig2(4)()
    lane_parts()
    a("v_mul_u32_u24 v%d, 96, v%d" % (t3, vR8))
    a("v_add_u32 v%d, v%d, v%d" % (t3, t3, vC8))
    a("v_mul_u32_u24 v%d, 6272, v%d" % (t4, vQ1))
    a("v_add_u32 v%d, v%d, v%d" % (vWA[0], t3, t4))
    a("v_add_u32 v%d, 0x10000, v%d" % (vWA[1], vWA[0]))
    a("v_add_u32 v%d, 0x20000, v%d" % (vWA[2], vWA[0]))
    a("v_bfe_u32 v%d, v%d, 2, 2" % (t3, l))
    a("v_lshl_add_u32 v%d, v%d, 2, v%d" % (t3, vHi, t3))
    a("v_lshl_add_u32 v%d, v%d, 5, v%d" % (vDR[3], t3, vC8))
    a("v_lshl_add_u32 v%d, v%d, 6, v%d" % (t3, t3, vC8))
    a("v_lshl_add_u32 v%d, v%d, 5, v%d" % (vDR[0], vQ1, t3))
    for b in (1, 2):
        a("v_add_u32 v%d, 0x%x, v%d" % (vDR[b], b << 16, vDR[0]))
        a("v_add_u32 v%d, 0x%x, v%d" % (vDR[3 + b], b << 16, vDR[3]))
    sHb = 10
    a("s_mul_i32 s%d, s%d, 112 * 1024" % (sHb, sRg))
    a("s_add_u32 s%d, s%d, 0x%x" % (sHb, sHb, WS_H))
    a("s_mul_i32 s%d, s%d, 3072" % (sT0, sH))
    a("s_add_u32 s%d, s%d, s%d" % (sHo, sHb, sT0))
    a("s_add_u32 s%d, s%d, 65536" % (sHo, sHo))

    def fh_load():
        a("buffer_load_dword v%d, v%d, %s, 0 offen sc1" % (vPo, vFH, sr(sWS, 4)))
        vg.issue("fh")
    def h_loads(ps):
        def f():
            vg.wait("fh")
            glb_poll(sWS, vFH, "0", ps, vPo, pre=True)
            stamp(17 + ps)
            ns = (4, 3)[ps - 1]
            for p in range(1, 4):
                a("s_add_u32 s%d, s%d, %d" % (sT0, sH, p))
                a("s_and_b32 s%d, s%d, 3" % (sT0, sT0))
                a("s_add_u32 s%d, s%d, s%d" % (sT0, sT0, sJb))
                a("s_mul_i32 s%d, s%d, %d" % (sT0, sT0, ns * 1024))
                a("s_add_u32 s%d, s%d, s%d" % (sT0, sT0, sHb))
                if ps == 2:
                    a("s_add_u32 s%d, s%d, 65536" % (sT0, sT0))
                for k in range(ns):
                    q = (7, 19)[ps - 1] + ns * (p - 1) + k
                    a("buffer_load_dwordx4 %s, v%d, %s, s%d offen offset:%d %s" % (vr(hreg(q), 4), vSt, sr(sWS, 4), sT0, k * 1024, LP))
                    vg.issue(("H", q))
        return f
    def hflag(v):
        def f():
            vg.wait("st")
            flag_store(sFH, v)
        return f
    stamp(16)
    hk = {}
    addhook(hk, 1, pread)
    addhook(hk, 4, d_issue(2))
    SL2 = opt.get("sl2", 6)
    for c in range(3, 7):
        n = 12 * (c - 1) + SL2
        addhook(hk, n - 3, pread)
        addhook(hk, n, d_issue(c))
    addhook(hk, opt.get("hf1", 20), hflag(1))
    addhook(hk, opt.get("hf1", 20), sig2(6))
    addhook(hk, opt.get("fhn", 56), fh_load)
    addhook(hk, opt.get("fhc", 70), h_loads(1))
    addhook(hk, opt.get("fhc", 70), sig2(9))
    assert opt.get("fhc", 70) >= 36
    gemm_pass(2, hk)
    stamp(13)
    lg.clear()
    a("s_nop 7")
    a("s_nop 3")
    glu(3)
    stamp(17)
    sig2(11)()
    hk = {}
    addhook(hk, opt.get("hf2", 8), hflag(2))
    addhook(hk, opt.get("f2n", 40), fh_load)
    addhook(hk, opt.get("f2c", 52), h_loads(2))
    assert opt.get("f2c", 52) < 75
    gemm_pass(3, hk)
    stamp(20)
    lg.clear()
    sPo, sPi, sFPo, sWoo, sWol = 11, 18, 19, 22, 23
    vFP, vFO2, vRW, vRW3, vWr2, vRd2, vOut = 16, 17, 18, 36, 37, 38, 15
    a("s_lshl_b32 s%d, s%d, 4" % (sT0, sRt))
    a("s_add_u32 s%d, s%d, s%d" % (sT1, sT0, sH))
    a("s_lshl_b32 s%d, s%d, 2" % (sT1, sT1))
    a("s_add_u32 s%d, s%d, s%d" % (sT1, sT1, sGw))
    a("s_lshl_b32 s%d, s%d, 14" % (sPo, sT1))
    a("s_add_u32 s%d, s%d, 0x%x" % (sPo, sPo, WS_P))
    a("s_lshl_b32 s%d, s%d, 2" % (sFPo, sT1))
    a("s_add_u32 s%d, s%d, 0x%x" % (sFPo, sFPo, WS_F + 12288))
    a("s_cmp_eq_u32 s%d, s%d" % (sGw, sJ))
    a("s_cbranch_scc1 f_nost")
    a("s_nop 3")
    for k in range(14):
        st4(ACD + 4 * k, sPo, (k % 4) * 1024)
        if k % 4 == 3:
            a("s_add_u32 s%d, s%d, 4096" % (sPo, sPo))
    a.label("f_nost")
    a("s_and_b32 s%d, s%d, 3" % (sT1, sH))
    a("s_lshl_b32 s%d, s%d, 2" % (sT2, sGw))
    a("s_add_u32 s%d, s%d, s%d" % (sT1, sT1, sT2))
    a("s_add_u32 s%d, s%d, s%d" % (sT1, sT1, sT0))
    a("s_lshl_b32 s%d, s%d, 2" % (sT1, sT1))
    a("s_add_u32 s%d, s%d, s%d" % (sT1, sT1, sJ))
    a("s_lshl_b32 s%d, s%d, 14" % (sPi, sT1))
    a("s_add_u32 s%d, s%d, 0x%x" % (sPi, sPi, WS_P))
    a("s_lshl_b32 s%d, s%d, 2" % (sT1, sT1))
    a("s_add_u32 s%d, s%d, 0x%x" % (sT1, sT1, WS_F + 12288))
    a("v_mov_b32 v%d, s%d" % (vFP, sT1))
    a("s_mul_i32 s%d, s%d, %d" % (sWoo, sGw, 112 * 896))
    a("s_mul_i32 s%d, s%d, %d" % (sWol, sGw, WOSZ))
    a("s_add_u32 s%d, s%d, 0x%x" % (sWol, sWol, L_WO))
    lds_poll(vFl, F_P, 28, FB, t6)
    vg.clear()
    for k in range(7):
        for t in range(3):
            a("s_add_u32 s%d, s%d, %d" % (sT0, sWoo, 16 * 896 * k + 64 * t))
            dma(vD64, sWO, sT0, sWol, t * 7168 + k * 1024)
        if k % 2 == 0:
            a("s_add_u32 s%d, s%d, %d" % (sT0, sWoo, 16 * 896 * k))
            dma(vD32, sWO, sT0, sWol, 21504 + k * 512)
    stamp(21)
    sOo2 = sPo
    a("s_lshl_b32 s%d, s%d, 2" % (sT2, sRt))
    a("s_add_u32 s%d, s%d, s%d" % (sT2, sT2, sJ))
    a("s_lshl_b32 s%d, s%d, 2" % (sT0, sT2))
    a("s_add_u32 s%d, s%d, s%d" % (sT0, sT0, sGw))
    a("s_lshl_b32 s%d, s%d, 13" % (sOo2, sT0))
    a("s_add_u32 s%d, s%d, 0x%x" % (sOo2, sOo2, WS_O))
    a("s_lshl_b32 s%d, s%d, 4" % (sT0, sT0))
    a("s_add_u32 s%d, s%d, 0x%x" % (sT0, sT0, WS_F + 8192))
    a("v_and_b32 v%d, 3, v%d" % (t0, l))
    a("v_lshl_add_u32 v%d, v%d, 2, s%d" % (vFO2, t0, sT0))
    a("s_lshl_b32 s%d, s%d, 5" % (sT0, sT2))
    a("v_and_b32 v%d, 31, v%d" % (t4, l))
    a("v_add_u32 v%d, s%d, v%d" % (t4, sT0, t4))
    a("v_lshrrev_b32 v%d, 5, v%d" % (t3, l))
    a("v_mul_u32_u24 v%d, 896, v%d" % (t4, t4))
    a("v_lshl_add_u32 v%d, v%d, 4, v%d" % (t4, t3, t4))
    a("s_lshl_b32 s%d, s%d, 6" % (sT0, sGw))
    a("s_add_u32 s%d, s%d, s%d" % (sT0, sT0, sI112))
    a("v_add_u32 v%d, s%d, v%d" % (vOut, sT0, t4))
    a("v_add_u32 v%d, s%d, v%d" % (vRW, sWol, vDR[0]))
    a("v_add_u32 v%d, s%d, v%d" % (vRW3, sWol, vDR[3]))
    a("v_add_u32 v%d, s%d, v%d" % (vWr2, sWol, vSt))
    a("s_lshl_b32 s%d, s%d, 12" % (sT0, sGw))
    a("s_add_u32 s%d, s%d, 0x%x" % (sT0, sT0, L_WO))
    a("v_add_u32 v%d, s%d, v%d" % (vRd2, sT0, vSt))
    a("v_add_u32 v%d, 0x%x, v%d" % (t5, 2 * WOSZ, vRd2))
    a("s_cmp_eq_u32 s%d, s%d" % (sGw, sJ))
    a("s_cbranch_scc1 f_nold")
    a("s_waitcnt vmcnt(25)")
    flag_store(sFPo, 1)
    glb_poll(sWS, vFP, "0", 1, vPo, sleep=opt.get("psleep", 2))
    stamp(27)
    for k in range(14):
        a("buffer_load_dwordx4 %s, v%d, %s, s%d offen offset:%d %s" % (vr(ACD + 4 * k, 4), vSt, sr(sWS, 4), sPi, (k % 4) * 1024, LP))
        if k % 4 == 3:
            a("s_add_u32 s%d, s%d, 4096" % (sPi, sPi))
    a.label("f_nold")
    a("s_waitcnt vmcnt(0)")
    vg.clear()
    stamp(28)
    OB = ACC
    def woread(n):
        k, t = n // 4, n % 4
        d = WF + 4 * (n % NW)
        for half in range(2):
            r0 = 28 * (k // 2) + 16 * (k % 2) + 8 * half
            if t < 3:
                a("ds_read_b64_tr_b16 %s, v%d offset:%d" % (vr(d + 2 * half, 2), vRW, t * 7168 + r0 * 64))
            else:
                a("ds_read_b64_tr_b16 %s, v%d offset:%d" % (vr(d + 2 * half, 2), vRW3, 21504 + r0 * 32))
            lg.issue(("w", n))
    for n in range(NW - 1):
        woread(n)
    glb_poll(sWS, vFO2, "0", 1, vPo, sleep=opt.get("osleep", 2))
    stamp(22)
    for k in range(8):
        a("buffer_load_dwordx4 %s, v%d, %s, s%d offen offset:%d %s" % (vr(OB + 4 * k, 4), vSt, sr(sWS, 4), sOo2, (k % 4) * 1024, LP))
        vg.issue(("O", k))
        if k % 4 == 3:
            a("s_add_u32 s%d, s%d, 4096" % (sOo2, sOo2))
    for n in range(32):
        vg.wait(("O", n // 4))
        lg.wait(("w", n))
        d = ACD + 16 * (n % 4)
        mfma(d, WF + 4 * (n % NW), OB + 4 * (n // 4), vr(d, 16))
        if n + NW - 1 < 32:
            woread(n + NW - 1)
    stamp(23)
    a("s_nop 7")
    a("s_nop 1")
    for k in range(14):
        a("ds_write_b128 v%d, %s offset:%d" % (vWr2, vr(ACD + 4 * k, 4), k * 1024))
    a("v_mov_b32 v%d, 1" % t0)
    a("ds_write_b32 v%d, v%d offset:%d" % (vPw, t0, F_DN))
    lds_poll(vFl, F_DN, 1, FB, t6)
    R = ACC
    for v in range(4):
        for quad in range(4):
            a("ds_read_b128 %s, v%d offset:%d" % (vr(R + 16 * v + 4 * quad, 4), (vRd2, t5)[v // 2], (v % 2) * WOSZ + quad * 1024))
    a("s_waitcnt lgkmcnt(8)")
    for i in range(16):
        a("v_add_f32 v%d, v%d, v%d" % (R + i, R + i, R + 16 + i))
    a("s_waitcnt lgkmcnt(0)")
    for i in range(16):
        a("v_add_f32 v%d, v%d, v%d" % (R + 32 + i, R + 32 + i, R + 48 + i))
    for i in range(16):
        a("v_add_f32 v%d, v%d, v%d" % (R + i, R + i, R + 32 + i))
    PKD = R + 16
    for i in range(8):
        a("v_cvt_pk_bf16_f32 v%d, v%d, v%d" % (PKD + i, R + 2 * i, R + 2 * i + 1))
    a("s_nop 1")
    for pr in range(2):
        b = PKD + 4 * pr
        a("v_permlane32_swap_b32 v%d, v%d" % (b, b + 2))
        a("v_permlane32_swap_b32 v%d, v%d" % (b + 1, b + 3))
    a("s_cmp_eq_u32 s%d, 3" % sGw)
    a("buffer_store_dwordx4 %s, v%d, %s, 0 offen" % (vr(PKD, 4), vOut, sr(sOut, 4)))
    a("s_cbranch_scc1 f_last")
    a("buffer_store_dwordx4 %s, v%d, %s, 0 offen offset:32" % (vr(PKD + 4, 4), vOut, sr(sOut, 4)))
    a.label("f_last")
    trace_flush()
    a.label("f_exit")
    a("s_endpgm")

    nv = 256 if TRACE else 248
    desc = """.p2align 6
.amdhsa_kernel %s
  .amdhsa_next_free_vgpr %d
  .amdhsa_next_free_sgpr 102
  .amdhsa_accum_offset %d
  .amdhsa_group_segment_fixed_size 0
  .amdhsa_kernarg_size 88
  .amdhsa_user_sgpr_count 2
  .amdhsa_user_sgpr_kernarg_segment_ptr 1
  .amdhsa_system_sgpr_workgroup_id_x 1
.end_amdhsa_kernel
""" % (name, nv, nv)
    hdr = "; @launch kernel=%s grid=(256,1,1) block=(512,1,1) lds=%d" % (name, F_LDS)
    return hdr + "\n" + a.text() + '.section .rodata,"a"\n' + desc


def main():
    out = sys.argv[1]
    opt = {}
    for kv in sys.argv[2:]:
        k, v = kv.split("=")
        try: v = int(v)
        except ValueError: pass
        opt[k] = v
    open(out, "w").write(gen(opt))

if __name__ == "__main__":
    main()
```
